```python
import torch

def _softmax(x, axis=-1):
    return torch.softmax(x, dim=axis)
def _gelu(x):
    return torch.nn.functional.gelu(x, approximate="tanh")
def _silu(x):
    return torch.nn.functional.silu(x)
def _sigmoid(x):
    return torch.sigmoid(x)
def _layernorm(x, axis=-1, eps=1e-5):
    m = x.mean(dim=axis, keepdim=True)
    v = x.var(dim=axis, keepdim=True, unbiased=False)
    return (x - m) / torch.sqrt(v + eps)
def _scatter_add(tgt, idx, src, axis=0):
    return tgt.clone().index_add_(axis, idx, src)
def _segment_sum(src, seg, n):
    out = torch.zeros((n,) + src.shape[1:], dtype=src.dtype)
    return out.index_add_(0, seg, src)
def _pad(x, pw):
    flat = tuple(v for pair in reversed(pw) for v in pair)
    return torch.nn.functional.pad(x, flat)

kernel_name = 'parallel_sum__sliding_block__dense_activation_relu__prompt'

def setup_inputs():

    _w = (lambda a: (lambda t: t.to(torch.bfloat16) if t.is_floating_point() else t)(torch.as_tensor(a)))
    def _A_setup():
        B, S, D = 1, 2048, 512
        return {
            "x": _w((lambda *s: torch.randn(*s, dtype=torch.bfloat16) * 0.05)(B, S, D)),
            "wqkv": _w((lambda *s: torch.randn(*s, dtype=torch.bfloat16) * 0.05)(D, 3 * D)),
            "wo": _w((lambda *s: torch.randn(*s, dtype=torch.bfloat16) * 0.05)(D, D)),
        }
    _A_in = _A_setup()

    def _B_setup():
        B, S, D, Dff = 1, 2048, 512, 1376
        return {
            "x": _w((lambda *s: torch.randn(*s, dtype=torch.bfloat16) * 0.05)(B, S, D)),
            "w1": _w((lambda *s: torch.randn(*s, dtype=torch.bfloat16) * 0.05)(D, Dff)),
            "w2": _w((lambda *s: torch.randn(*s, dtype=torch.bfloat16) * 0.05)(Dff, D)),
        }
    _B_in = _B_setup()

    return {
        "A_x": _A_in["x"],
        "A_wqkv": _A_in["wqkv"],
        "A_wo": _A_in["wo"],
        "B_x": _B_in["x"],
        "B_w1": _B_in["w1"],
        "B_w2": _B_in["w2"],
    }

def reference(A_x, A_wqkv, A_wo, B_x, B_w1, B_w2):
    def _A_ref(x, wqkv, wo):
        B, S, D = x.shape
        H = 32; Dh = D // H; W = 256
        qkv = (lambda x, *d: x.permute(*d))((x @ wqkv).reshape(B, S, 3, H, Dh), 2, 0, 3, 1, 4)
        q, k, v = qkv[0], qkv[1], qkv[2]
        scores = torch.einsum("bhqd,bhkd->bhqk", q, k) * (Dh ** -0.5)
        idx = torch.arange(S)
        mask = (idx[:, None] - idx[None, :] >= 0) & (idx[:, None] - idx[None, :] < W)
        scores = torch.where(mask[None, None], scores, -1e9)
        p = _softmax(scores, axis=-1)
        o = torch.einsum("bhqk,bhkd->bhqd", p, v)
        return (lambda x, *d: x.permute(*d))(o, 0, 2, 1, 3).reshape(B, S, D) @ wo

    def _B_ref(x, w1, w2):
        h = torch.einsum("bsd,df->bsf", x, w1)
        zero = torch.zeros_like(h)
        h = torch.maximum(h, zero)
        return torch.einsum("bsf,fd->bsd", h, w2)

    x = A_x
    xn = _layernorm(x, axis=-1)
    return x + _A_ref(xn, A_wqkv, A_wo) + _B_ref(xn, B_w1, B_w2)
```

```python
import re

class Asm:
    def __init__(self):
        self.lines = []
        self.vm = []
        self.lg = []
        self.uid = 0
        self.stubs = []
    def e(self, s):
        for l in s.split('\n'):
            l = l.strip()
            if l: self.lines.append(l)
    def c(self, s):
        self.lines.append('; ' + s)
    def label(self, name):
        self.lines.append(name + ':')
    def newlabel(self, p='L'):
        self.uid += 1
        return f'{p}_{self.uid}'
    def emit_stubs(self):
        for lab in self.stubs:
            self.label(lab + '_stub')
            self.e(f's_nop 7\ns_nop 7\ns_branch {lab}')
        self.stubs = []
    def vmem(self, s, tag=None):
        self.e(s); self.vm.append(tag)
    def vm_count_after(self, tags):
        if not isinstance(tags, (list, set)): tags = [tags]
        last = -1
        for i, t in enumerate(self.vm):
            if t in tags: last = i
        if last < 0: return None
        return len(self.vm) - 1 - last
    def vm_wait(self, tags, extra=''):
        n = self.vm_count_after(tags)
        if n is None: return
        n = min(n, 63)
        self.e(f's_waitcnt vmcnt({n})' + extra)
        self.vm = self.vm[len(self.vm) - n:] if n > 0 else []
    def vm_drain(self):
        self.e('s_waitcnt vmcnt(0)'); self.vm = []
    def lds(self, s, tag=None):
        self.e(s); self.lg.append(tag)
    def lg_wait(self, tags):
        if not isinstance(tags, (list, set)): tags = [tags]
        last = -1
        for i, t in enumerate(self.lg):
            if t in tags: last = i
        if last < 0: return
        n = len(self.lg) - 1 - last
        n = min(n, 15)
        self.e(f's_waitcnt lgkmcnt({n})')
        self.lg = self.lg[len(self.lg) - n:] if n > 0 else []
    def lg_drain(self):
        self.e('s_waitcnt lgkmcnt(0)'); self.lg = []
    nst = 0
    stamps_on = False
    def stamp(self):
        if not self.stamps_on: return
        self.e('s_memtime s[70:71]\ns_waitcnt lgkmcnt(0)')
        self.lg = []
        self.e(f's_mov_b32 s{72 + self.nst}, s70')
        self.nst += 1
    def dump_stamps(self, per_wg=32):
        if not self.stamps_on: return
        self.e('s_load_dwordx2 s[92:93], s[0:1], 56\ns_waitcnt lgkmcnt(0)')
        self.e('s_mov_b32 s96, s92\ns_and_b32 s97, s93, 0xffff\ns_mov_b32 s98, 0x100000\ns_mov_b32 s99, 0x20000')
        self.e(f's_mul_i32 s94, s2, {per_wg*4}')
        self.e('v_cmp_eq_u32 vcc, 0, v0\ns_and_saveexec_b64 s[100:101], vcc')
        lab = self.newlabel('Lst')
        self.e(f's_cbranch_execz {lab}')
        self.e('v_mov_b32 v3, 0')
        for k in range(self.nst):
            self.e(f'v_mov_b32 v2, s{72+k}')
            self.e(f'buffer_store_dword v2, v3, s[96:99], s94 offen offset:{4*k}')
        self.label(lab)
        self.e('s_mov_b64 exec, s[100:101]')
    def text(self):
        return '\n'.join(self.lines) + '\n'

_reg = re.compile(r'\b([vas])\[(\d+):(\d+)\]|\b([vas])(\d+)\b')
def regs_of(op):
    out = set()
    for m in _reg.finditer(op):
        if m.group(1):
            for r in range(int(m.group(2)), int(m.group(3)) + 1): out.add((m.group(1), r))
        else:
            out.add((m.group(4), int(m.group(5))))
    if re.search(r'\bvcc\b', op): out.add(('s', 'vcc'))
    if re.search(r'\bm0\b', op): out.add(('s', 'm0'))
    if re.search(r'\bexec\b', op): out.add(('s', 'exec'))
    return out

TRANS = ('v_exp_f32', 'v_log_f32', 'v_rcp_f32', 'v_rsq_f32', 'v_sqrt_f32', 'v_sin_f32', 'v_cos_f32')
def parse(line):
    l = line.split(';')[0].strip()
    if not l or l.endswith(':') or l.startswith('.'): return None
    parts = l.split(None, 1)
    op = parts[0]
    ops = [o.strip() for o in parts[1].split(',')] if len(parts) > 1 else []
    d = dict(op=op, text=l)
    is_mfma = op.startswith('v_mfma')
    is_valu = op.startswith('v_') and not is_mfma
    d['mfma'] = is_mfma; d['valu'] = is_valu
    d['trans'] = op.replace('_e32', '').replace('_e64', '') in TRANS
    wr = set(); rd = set()
    if is_mfma:
        wr = regs_of(ops[0]); d['A'] = regs_of(ops[1]); d['B'] = regs_of(ops[2]); d['C'] = regs_of(ops[3])
        rd = d['A'] | d['B'] | d['C']
        d['passes'] = 8 if '32x32' in op else 4
    elif is_valu:
        if op.startswith('v_cmp'):
            wr = regs_of(ops[0]); rd = set().union(*[regs_of(o) for o in ops[1:]]) if len(ops) > 1 else set()
        elif op.startswith('v_permlane') and 'swap' in op:
            wr = regs_of(ops[0]) | regs_of(ops[1]); rd = set(wr)
        elif op.startswith('v_readfirstlane') or op.startswith('v_readlane'):
            wr = regs_of(ops[0]); rd = regs_of(ops[1])
        else:
            wr = regs_of(ops[0]); rd = set().union(*[regs_of(o) for o in ops[1:]]) if len(ops) > 1 else set()
            if op.startswith(('v_fmac', 'v_dot2c', 'v_pk_fmac')): rd |= wr
            if op.startswith('v_cndmask') and len(ops) == 3: rd.add(('s', 'vcc'))
            if op.startswith(('v_add_co', 'v_sub_co', 'v_addc_co')): wr |= regs_of(ops[1])
    elif op.startswith('ds_'):
        if op.startswith('ds_read') or 'rtn' in op or op.startswith('ds_bpermute') or op.startswith('ds_swizzle'):
            wr = regs_of(ops[0]); rd = set().union(*[regs_of(o) for o in ops[1:]])
        else:
            rd = set().union(*[regs_of(o) for o in ops])
        d['ds'] = True
    elif op.startswith(('buffer_', 'global_')):
        d['vmem'] = True
        if 'load' in op and ' lds' not in l:
            wr = regs_of(ops[0]); rd = set().union(*[regs_of(o) for o in ops[1:]])
        else:
            rd = set().union(*[regs_of(o) for o in ops]) if ops else set()
        if ' lds' in l: rd.add(('s', 'm0'))
        d['store'] = 'store' in op
        d['wide'] = d['store'] and ('x4' in op or 'x3' in op)
    elif op.startswith('s_'):
        d['salu'] = True
        if op in ('s_waitcnt', 's_barrier', 's_nop', 's_endpgm', 's_branch', 's_setprio', 's_sleep') or op.startswith('s_cbranch'):
            pass
        elif op.startswith('s_cmp'):
            rd = set().union(*[regs_of(o) for o in ops])
        else:
            wr = regs_of(ops[0]) if ops else set(); rd = set().union(*[regs_of(o) for o in ops[1:]]) if len(ops) > 1 else set()
    d['wr'] = wr; d['rd'] = rd
    d['ws'] = 1
    if op == 's_nop': d['ws'] = int(ops[0], 0) + 1
    return d

def check_hazards(lines, verbose=True):
    ins = []
    for i, l in enumerate(lines):
        p = parse(l)
        if p: p['ln'] = i; ins.append(p)
    errs = []
    for i, a in enumerate(ins):
        dist = 0
        for j in range(i + 1, min(i + 24, len(ins))):
            b = ins[j]
            need = 0; why = ''
            def chk(n, w):
                nonlocal need, why
                if n > need: need = n; why = w
            if a['valu']:
                vw = {r for r in a['wr'] if r[0] in 'va'}
                sw = {r for r in a['wr'] if r[0] == 's'}
                if b['mfma'] and (vw & b['rd']): chk(2, 'VALU->MFMA')
                if b['valu'] and b['op'].startswith('v_permlane') and (vw & b['rd']): chk(2, 'VALU->permlane')
                if b['valu'] and b['op'].startswith(('v_readfirstlane', 'v_readlane')) and (vw & b['rd']): chk(1, 'VALU->readlane')
                if a['trans'] and b['valu'] and not b['trans'] and (vw & b['rd']): chk(1, 'trans->VALU')
                if a['trans'] and b['mfma'] and (vw & b['rd']): chk(2, 'trans->MFMA')
                if sw and b.get('vmem') and (sw & b['rd']): chk(5, 'VALU sgpr->VMEM')
                if sw and b['valu'] and (sw & b['rd']): chk(2, 'VALU sgpr->VALU')
                if sw and b.get('salu') and (sw & b['rd']): chk(3, 'VALU sgpr->SALU (pad)')
                if 'dpp' in b['text'] or 'row_' in b['text']:
                    if vw & b['rd']: chk(2, 'VALU->DPP')
                if ('op_sel' in a['text'] and not a['op'].startswith('v_pk')) and b['valu'] and (vw & b['rd']): chk(1, 'opsel')
            if a['op'].startswith('v_dot') and not b['op'].startswith('v_dot') and ((a['wr'] & b['rd']) or (a['wr'] & b['wr'])): chk(3, 'DOT->other')
            if a['mfma']:
                P = a['passes']
                D = a['wr']
                raw = {8: 12, 4: 8}[P]
                if b['mfma']:
                    if (D & b['C']) and not (D == b['C'] and b['wr'] == D or D == b['C']): chk({8: 10, 4: 6}[P], 'MFMA D->C partial')
                    if D & (b['A'] | b['B']): chk(raw, 'MFMA D->A/B')
                elif b['valu'] and ((D & b['rd']) or (D & b['wr'])): chk(raw, 'MFMA D->VALU')
                elif (b.get('ds') or b.get('vmem')) and ((D & b['rd']) or (D & b['wr'])): chk(raw, 'MFMA D->MEM')
                if b['valu'] and (a['C'] & b['wr']) and not (D & b['wr']): chk({8: 7, 4: 3}[P], 'MFMA C WAR')
            if a.get('wide') and b['valu']:
                data = regs_of(a['text'].split(None, 1)[1].split(',')[0]) if a['op'].startswith('buffer') else set()
                if data & b['wr']: chk(2, 'store data WAR')
            if a.get('salu') and ('s', 'm0') in a['wr'] and b.get('vmem') and ('s', 'm0') in b['rd']: chk(1, 'M0->DMA')
            if need > dist:
                errs.append((a['ln'], b['ln'], why, need, dist, a['text'], b['text']))
            dist += b['ws']
            if dist >= 20: break
    if verbose:
        for e in errs[:40]:
            print(f'HAZARD {e[2]} need {e[3]} have {e[4]}: [{e[0]}] {e[5]}  ->  [{e[1]}] {e[6]}')
    return errs
```

```python
import sys
from asmlib import *
import k1

HDR = open('parallel_sum__sliding_block__dense_activation_relu__prompt.s.ref').read().split('; Override launch')[0]

def build(kernels, path, stamps=False):
    out = HDR
    for (name, fn, grid, block, lds, nv, acc) in kernels:
        out += f'; @launch kernel={name} grid=({grid},1,1) block=({block},1,1) lds={lds}\n'
    out += '.amdgcn_target "amdgcn-amd-amdhsa--gfx950"\n.text\n'
    allok = True
    for (name, fn, grid, block, lds, nv, acc) in kernels:
        a = Asm(); a.stamps_on = stamps
        fn(a, name)
        errs = check_hazards(a.lines)
        if errs: allok = False
        out += a.text()
    out += '.section .rodata,"a"\n'
    for (name, fn, grid, block, lds, nv, acc) in kernels:
        out += '.p2align 6\n' + k1.kd(name, nv, acc)
    open(path, 'w').write(out)
    print('written', path, len(out), 'bytes; hazards ok' if allok else 'HAZARDS')

if __name__ == '__main__':
    ks = [('p1_kernel', lambda a, n: k1.phase1(a, n), 256, 256, k1.K1_LDS, 384, 256)]
    build(ks, 'p1.s')
    build(ks, 'p1s.s', stamps=True)

    for t in [('pro',),(),('nodma2',), ('nobar2',), ('nocs',), ('nostats',), ('vgprB',), ('nodma2','nobar2','nocs')]:
        ks = [('p1_kernel', lambda a, n, t=t: k1.phase1(a, n, tog=t), 256, 256, k1.K1_LDS, 384, 256)]
        build(ks, 'p1s_' + '_'.join(t) + 'x.s', stamps=True)
```

```python
from asmlib import *

WS_Q = 0
WS_K = 2 << 20
WS_V = 4 << 20
WS_H = 6 << 20
WS_O = 12 << 20
WS_F = 15 << 20
WS_SIZE = 16 << 20
QSCALE = 0x3EB8AA3B
import struct
def f2u(x): return struct.unpack('<I', struct.pack('<f', x))[0]
QSCALE = f2u(0.25 * 1.4426950408889634)

def header(a, name):
    a.e(f'.globl {name}\n.p2align 8\n.type {name},@function')
    a.label(name)

def kd(name, nvgpr, accum, nsgpr=102):
    return f'''.amdhsa_kernel {name}
  .amdhsa_next_free_vgpr {nvgpr}
  .amdhsa_next_free_sgpr {nsgpr}
  .amdhsa_accum_offset {accum}
  .amdhsa_group_segment_fixed_size 0
  .amdhsa_kernarg_size 72
  .amdhsa_user_sgpr_count 2
  .amdhsa_user_sgpr_kernarg_segment_ptr 1
  .amdhsa_system_sgpr_workgroup_id_x 1
  .amdhsa_float_denorm_mode_32 3
.end_amdhsa_kernel
'''

def srd(a, s, ptr, size):
    a.e(f's_mov_b32 s{s}, s{ptr}')
    a.e(f's_and_b32 s{s+1}, s{ptr+1}, 0xffff')
    a.e(f's_mov_b32 s{s+2}, {size}')
    a.e(f's_mov_b32 s{s+3}, 0x20000')

NST = 6
WST = 12288
XRING = NST * WST
XSL = 16384
CS_OFF = XRING + 4 * XSL
K1_LDS = CS_OFF + 8192

def phase1(a, name, st_flags='', tog=()):
    header(a, name)
    end = f'{name}_end'
    a.e(f's_cmp_ge_u32 s2, 256\ns_cbranch_scc1 {end}')
    a.stamp()
    a.e('s_load_dwordx4 s[60:63], s[0:1], 0')
    a.e('s_load_dwordx2 s[64:65], s[0:1], 32')
    a.e('s_load_dwordx2 s[66:67], s[0:1], 64')
    a.e('v_and_b32 v1, 63, v0')
    a.e('v_lshrrev_b32 v2, 6, v0')
    a.e('s_and_b32 s32, s2, 7\ns_lshr_b32 s33, s2, 3')
    a.e('v_readfirstlane_b32 s20, v2')
    a.e('s_and_b32 s21, s32, 1\ns_lshl_b32 s21, s21, 3\ns_and_b32 s34, s33, 7\ns_add_u32 s21, s21, s34')
    a.e('s_lshr_b32 s22, s32, 1\ns_lshl_b32 s22, s22, 2\ns_lshr_b32 s34, s33, 3\ns_add_u32 s22, s22, s34')
    a.e('v_lshrrev_b32 v2, 3, v1\nv_lshlrev_b32 v2, 10, v2')
    a.e('v_and_b32 v3, 7, v1\nv_lshrrev_b32 v4, 4, v1\nv_xor_b32 v3, v3, v4')
    a.e('v_lshl_add_u32 v8, v3, 4, v2')
    a.e('v_xor_b32 v3, 4, v3\nv_lshl_add_u32 v9, v3, 4, v2')
    a.e('v_add_u32 v10, 14336, v8\nv_add_u32 v11, 21504, v9\nv_add_u32 v9, 7168, v9')
    a.e('s_mov_b32 s35, 43691\ns_movk_i32 s36, 3072\ns_movk_i32 s37, 2752')
    for t in range(3):
        a.e(f'v_add_u32 v2, {64*t}, v1')
        a.e('v_mul_u32_u24 v3, s35, v2\nv_lshrrev_b32 v3, 19, v3')
        a.e('v_mul_u32_u24 v4, 12, v3\nv_sub_u32 v4, v2, v4\nv_lshlrev_b32 v4, 4, v4')
        if t: a.e(f'v_subrev_u32 v4, {1024*t}, v4')
        a.e(f'v_mad_u32_u24 v{12+t}, v3, s36, v4')
        a.e(f'v_mad_u32_u24 v{15+t}, v3, s37, v4')
    a.e('s_lshl_b32 s23, s21, 7\ns_lshl_b32 s34, s20, 5\ns_add_u32 s23, s23, s34\ns_lshl_b32 s23, s23, 10')
    a.e('s_mul_i32 s24, s20, 49152\ns_mul_i32 s34, s22, 192\ns_add_u32 s24, s24, s34')
    a.e('s_mul_i32 s38, s20, 44032\ns_add_u32 s38, s38, s34')
    a.e('s_mul_i32 s25, s20, 3072')
    a.e(f's_lshl_b32 s26, s20, 12\ns_add_u32 s26, s26, {XRING}')
    a.stamp() if 'pro' in tog else None
    a.e('s_waitcnt lgkmcnt(0)')
    a.stamp() if 'pro' in tog else None
    srd(a, 4, 60, 2 << 20)
    srd(a, 8, 62, 512 * 1536 * 2)
    srd(a, 12, 64, 512 * 1376 * 2)
    srd(a, 16, 66, WS_SIZE)

    def dma_x_ops(c):
        ops = []
        def first():
            a.e(f's_add_u32 m0, s26, {(c % 4) * XSL}')
            if c: a.e(f's_add_u32 s23, s23, 128')
            else: a.e('s_nop 0')
        for t in range(4):
            def f(need_m0=False, t=t):
                if t == 0: first()
                elif need_m0: a.e(f's_add_u32 m0, s26, {(c % 4) * XSL}\ns_nop 0')
                a.vmem(f'buffer_load_dwordx4 v{8+t}, s[4:7], s23 offen offset:{1024*t} lds', ('x', c))
            f.kind = ('x', c)
            ops.append(f)
        return ops
    def dma_w_ops(c):
        ops = []
        def first():
            a.e(f's_add_u32 m0, s25, {(c % NST) * WST}')
            if c < 8:
                if c: a.e(f's_add_u32 s24, s24, {64*3072}')
                else: a.e('s_nop 0')
            else:
                if c > 8: a.e(f's_add_u32 s38, s38, {64*2752}')
                else: a.e('s_nop 0')
        for t in range(3):
            def f(need_m0=False, t=t):
                if t == 0: first()
                elif need_m0: a.e(f's_add_u32 m0, s25, {(c % NST) * WST}\ns_nop 0')
                if c < 8: a.vmem(f'buffer_load_dwordx4 v{12+t}, s[8:11], s24 offen offset:{1024*t} lds', ('w', c))
                else: a.vmem(f'buffer_load_dwordx4 v{15+t}, s[12:15], s38 offen offset:{1024*t} lds', ('w', c))
            f.kind = ('w', c)
            ops.append(f)
        return ops
    for c in range(3):
        for f in dma_x_ops(c): f()
        for f in dma_w_ops(c): f()
        a.stamp() if 'pro' in tog else None
    for f in dma_w_ops(3): f()
    a.stamp()

    a.e('v_lshrrev_b32 v2, 5, v1')
    a.e('v_bfe_u32 v3, v1, 2, 2')
    a.e('v_lshl_add_u32 v3, v2, 3, v3')
    a.e('v_mul_u32_u24 v3, 192, v3')
    a.e('v_bfe_u32 v4, v1, 4, 1\nv_lshlrev_b32 v4, 5, v4')
    a.e('v_and_b32 v5, 3, v1\nv_lshl_add_u32 v4, v5, 3, v4')
    a.e('v_add_u32 v3, v3, v4')
    a.e('v_and_b32 v4, 31, v1')
    a.e('v_bfe_u32 v5, v1, 1, 3')
    a.e('v_xor_b32 v5, v5, v2\nv_lshlrev_b32 v5, 4, v5')
    a.e('v_lshlrev_b32 v6, 7, v4\nv_add_u32 v6, s26, v6')
    for j in range(4):
        a.e(f's_add_u32 s34, s20, {j}\ns_and_b32 s34, s34, 3')
        a.e(f's_mul_i32 s35, s34, 3072\nv_add_u32 v{18+j}, s35, v3')
        a.e(f's_lshl_b32 s35, s34, 5\nv_xor_b32 v7, s35, v5\nv_add_u32 v{22+j}, v6, v7')
    SUM = 112; SQ = 116; CSA = [[224, 228, 232], [236, 240, 244]]
    a.e('v_mov_b32 v36, 0x3f803f80')
    for r in list(range(112, 120)) + list(range(224, 248)): a.e(f'v_mov_b32 v{r}, 0')
    a.e('v_lshlrev_b32 v40, 4, v1')
    a.e('v_lshrrev_b32 v2, 5, v1\nv_lshlrev_b32 v2, 4, v2\nv_lshl_add_u32 v41, v4, 5, v2')
    CSP = CS_OFF + 4 * 384 * 2
    a.e(f's_mul_i32 s34, s20, 384\ns_add_u32 s35, s34, {CS_OFF}')
    a.e('v_lshl_add_u32 v26, v4, 2, s35')
    a.e(f'v_lshlrev_b32 v27, 2, v1\nv_add_u32 v27, {CS_OFF}, v27')
    a.e(f's_add_u32 s35, s34, {CSP}\nv_lshl_add_u32 v28, v1, 2, s35')
    a.e('v_add_u32 v7, s35, v2')
    a.e('s_lshl_b32 s39, s21, 2\ns_add_u32 s39, s39, s20')
    for i in range(3):
        a.e(f's_mul_i32 s34, s22, 3\ns_add_u32 s34, s34, {i}')
        a.e('s_lshr_b32 s35, s34, 4')
        a.e('s_and_b32 s34, s34, 15\ns_lshl_b32 s34, s34, 17')
        a.e(f's_lshl_b32 s{40+i}, s35, 21\ns_add_u32 s{40+i}, s{40+i}, s34')
        a.e(f's_lshl_b32 s34, s39, 10\ns_add_u32 s{40+i}, s{40+i}, s34')
        a.e(f's_cmp_eq_u32 s35, 0\ns_cselect_b32 s{44+i}, {QSCALE}, 1.0')
        a.e(f's_cmp_eq_u32 s35, 2\ns_cselect_b64 vcc, -1, 0')
        a.e(f'v_cndmask_b32 v{37+i}, v40, v41, vcc')
    a.e(f's_mul_i32 s43, s39, 86\ns_mul_i32 s34, s22, 6\ns_add_u32 s43, s43, s34\ns_lshl_b32 s43, s43, 10\ns_add_u32 s43, s43, {WS_H}')

    XT = [48, 52]; WF = [56, 68]; ACC = [128, 176]
    def BOP(n):
        if 'vgprB' in tog: return 'v[48:51]'
        return f'a[{4*(n%32)}:{4*(n%32)+3}]'
    def read_w(n, i):
        c, j = divmod(n, 4)
        st = (c % NST) * WST
        for rd in range(2):
            r = WF[n & 1] + 4 * i + 2 * rd
            a.lds(f'ds_read_b64_tr_b16 v[{r}:{r+1}], v{18+j} offset:{st + rd*768 + 64*i}', ('rw', n, i))
    def read_xa(n):
        c, j = divmod(n, 4)
        if c < 8: a.lds(f'ds_read_b128 a[{4*n}:{4*n+3}], v{22+j} offset:{(c%4)*XSL}', ('rxa', n))
    def read_xt(n):
        c, j = divmod(n, 4)
        if c < 8: a.lds(f'ds_read_b128 v[{XT[n&1]}:{XT[n&1]+3}], v{22+j} offset:{(c%4)*XSL}', ('rxt', n))
    def reads(n):
        read_xa(n); read_w(n, 0); read_w(n, 1); read_xt(n); read_w(n, 2)

    def epi_tile(part, i, sub):
        acc = ACC[part] + 16 * i
        if sub == 0:
            for g in range(4):
                a.lds(f'ds_read_b128 v[{80+4*g}:{83+4*g}], v7 offset:{part*1536 + i*128 + g*32}', ('cs', part, i))
            return
        a.lg_wait(('cs', part, i))
        if part == 0: a.e(f'v_mul_f32 v46, s{44+i}, v44')
        rs = 46 if part == 0 else 44
        for q in range(8):
            a.e(f'v_pk_fma_f32 v[{80+2*q}:{81+2*q}], v[{80+2*q}:{81+2*q}], v[42:43], v[{acc+2*q}:{acc+2*q+1}] op_sel_hi:[1,0,1]')
        for q in range(8):
            a.e(f'v_pk_mul_f32 v[{80+2*q}:{81+2*q}], v[{80+2*q}:{81+2*q}], v[{rs}:{rs+1}] op_sel_hi:[1,0]')
        for q in range(8):
            a.e(f'v_cvt_pk_bf16_f32 v{96+8*(i&1)+q}, v{80+2*q}, v{81+2*q}')
        if part == 1:
            for q in range(8):
                a.e(f'v_pk_max_i16 v{96+8*(i&1)+q}, v{96+8*(i&1)+q}, 0')
        b = 96 + 8 * (i & 1)
        if part == 0:
            a.vmem(f'buffer_store_dwordx4 v[{b}:{b+3}], v{37+i}, s[16:19], s{40+i} offen {st_flags}', ('st', part, i))
            a.e(f's_add_u32 s{40+i}, s{40+i}, 65536')
            a.vmem(f'buffer_store_dwordx4 v[{b+4}:{b+7}], v{37+i}, s[16:19], s{40+i} offen {st_flags}', ('st', part, i))
        else:
            skip = a.newlabel('Lskip')
            a.e(f's_mul_i32 s34, s22, 3\ns_add_u32 s34, s34, {i}\ns_cmp_ge_u32 s34, 43\ns_cbranch_scc1 {skip}')
            a.e(f'buffer_store_dwordx4 v[{b}:{b+3}], v40, s[16:19], s43 offen offset:0 {st_flags}')
            a.e(f'buffer_store_dwordx4 v[{b+4}:{b+7}], v40, s[16:19], s43 offen offset:1024 {st_flags}')
            a.label(skip)
            a.e('s_add_u32 s43, s43, 2048')

    def finalize_stats():
        S, Q = SUM, SQ
        a.e(f'v_add_f32 v{S}, v{S}, v{S+1}\nv_add_f32 v{S+2}, v{S+2}, v{S+3}\nv_add_f32 v{Q}, v{Q}, v{Q+1}\nv_add_f32 v{Q+2}, v{Q+2}, v{Q+3}')
        a.e(f'v_add_f32 v{S}, v{S}, v{S+2}\nv_add_f32 v{Q}, v{Q}, v{Q+2}')
        a.e(f'v_mov_b32 v{S+1}, v{S}\nv_mov_b32 v{Q+1}, v{Q}\ns_nop 1')
        a.e(f'v_permlane32_swap_b32 v{S}, v{S+1}\nv_permlane32_swap_b32 v{Q}, v{Q+1}')
        a.e(f'v_add_f32 v{S}, v{S}, v{S+1}\nv_add_f32 v{Q}, v{Q}, v{Q+1}')
        a.e(f'v_mul_f32 v{S}, 0x3b000000, v{S}\nv_mul_f32 v{Q}, 0x3b000000, v{Q}')
        a.e(f'v_fma_f32 v{Q}, -v{S}, v{S}, v{Q}\nv_max_f32 v{Q}, 0, v{Q}')
        a.e(f'v_cvt_pk_bf16_f32 v{S}, v{S}, v{S}\nv_cvt_pk_bf16_f32 v{Q}, v{Q}, v{Q}')
        a.e(f'v_and_b32 v{S}, 0xffff0000, v{S}\nv_and_b32 v{Q}, 0xffff0000, v{Q}')
        a.e(f'v_add_f32 v{Q}, {f2u(1e-5):#x}, v{Q}')
        a.e(f'v_cvt_pk_bf16_f32 v{Q}, v{Q}, v{Q}\nv_and_b32 v{Q}, 0xffff0000, v{Q}')
        a.e(f'v_sqrt_f32 v{Q}, v{Q}\nv_sub_f32 v42, 0, v{S}')
        a.e(f'v_cvt_pk_bf16_f32 v{Q}, v{Q}, v{Q}\nv_and_b32 v{Q}, 0xffff0000, v{Q}')
        a.e(f'v_rcp_f32 v44, v{Q}')

    def cs_flush(part):
        for i in range(3):
            b = CSA[part][i]
            a.e(f'v_add_f32 v{b}, v{b}, v{b+1}\nv_add_f32 v{b+2}, v{b+2}, v{b+3}')
        for i in range(3):
            b = CSA[part][i]
            a.e(f'v_add_f32 v{b}, v{b}, v{b+2}')
        for i in range(3):
            b = CSA[part][i]
            a.e(f'v_mov_b32 v{b+1}, v{b}')
        a.e('s_nop 0')
        for i in range(3):
            b = CSA[part][i]
            a.e(f'v_permlane32_swap_b32 v{b}, v{b+1}')
        for i in range(3):
            b = CSA[part][i]
            a.e(f'v_add_f32 v{b}, v{b}, v{b+1}')
        for i in range(3):
            b = CSA[part][i]
            a.lds(f'ds_write_b32 v26, v{b} offset:{part*1536 + i*128}', ('csw', part))
    def cs_stage2_read(part):
        for w in range(4):
            a.lds(f'ds_read_b32 v{80+w}, v27 offset:{part*1536 + w*384}', ('cs2', part))
        for w in range(4):
            a.lds(f'ds_read_b32 v{84+w}, v27 offset:{part*1536 + w*384 + 256}', ('cs2', part))
    def cs_stage2_write(part):
        a.lg_wait(('cs2', part))
        a.e('v_add_f32 v80, v80, v81\nv_add_f32 v82, v82, v83\nv_add_f32 v84, v84, v85\nv_add_f32 v86, v86, v87')
        a.e('v_add_f32 v80, v80, v82\nv_add_f32 v84, v84, v86')
        a.lds(f'ds_write_b32 v28, v80 offset:{part*1536}', ('cs3', part))
        a.e('s_mov_b32 exec_hi, 0')
        a.lds(f'ds_write_b32 v28, v84 offset:{part*1536 + 256}', ('cs3', part))
        a.e('s_mov_b32 exec_hi, -1')

    a.vm_wait([('x', 0), ('w', 0)])
    a.e('s_barrier')
    a.stamp()
    reads(0)
    epi_sched = {}
    epi_sched[32] = [('stats',), ('cs2r', 0)]
    epi_sched[33] = [('cs2w', 0)]
    epi_sched[34] = [('t', 0, 0, 0)]
    epi_sched[35] = [('t', 0, 0, 1), ('t', 0, 1, 0)]
    epi_sched[37] = [('t', 0, 1, 1), ('t', 0, 2, 0)]
    epi_sched[39] = [('t', 0, 2, 1)]
    pending = []
    last_kind = [None]
    def issue_dma(k):
        for _ in range(k):
            if not pending: return
            f = pending.pop(0)
            f(last_kind[0] != f.kind); last_kind[0] = f.kind
    for n in range(64):
        c, j = divmod(n, 4)
        part = c // 8
        if j == 0:
            if c + 3 < 8: pending += dma_x_ops(c + 3)
            if c + 4 < 16 and not ('nodma2' in tog and c + 4 >= 8): pending += dma_w_ops(c + 4)
        if j == 3 and c < 15:
            need = [('w', c + 1)] + ([('x', c + 1)] if c + 1 < 8 else [])
            issue_dma(len(pending)) if False else None
            a.vm_wait(need)
            if c == 7: a.lg_wait(('csw', 0))
            if not ('nobar2' in tog and c >= 8): a.e('s_barrier')
            if c in (3, 7, 11): a.stamp()
        ndma = (len(pending) + (3 - j)) // (4 - j)
        for i in range(3):
            acc = ACC[part] + 16 * i
            w = WF[n & 1] + 4 * i
            cin = '0' if (n % 32) == 0 else f'v[{acc}:{acc+15}]'
            a.lg_wait([('rw', n, i)] + ([('rxa', n)] if (i == 0 and c < 8) else []))
            a.e(f'v_mfma_f32_32x32x16_bf16 v[{acc}:{acc+15}], v[{w}:{w+3}], {BOP(n)}, {cin}')
            if n + 1 < 64:
                if i == 0: read_xa(n + 1)
                read_w(n + 1, i)
                if i == 1: read_xt(n + 1)
            if c < 8 and 'nostats' not in tog:
                xt = XT[n & 1]
                if i == 0:
                    a.lg_wait(('rxt', n))
                    for q in range(4): a.e(f'v_dot2c_f32_bf16 v{SUM+q}, v{xt+q}, v36')
                if i == 1:
                    for q in range(4): a.e(f'v_dot2c_f32_bf16 v{SQ+q}, v{xt+q}, v{xt+q}')
            if j == 0 and not ('nocs' in tog):
                for q in range(4): a.e(f'v_dot2c_f32_bf16 v{CSA[part][i]+q}, v{w+q}, v36')
            if i < ndma or (i == 2 and ndma > 3): issue_dma(1 if i < 2 else max(1, ndma - 2))
        if j == 1 and c in (7, 15): cs_flush(part)
        for act in epi_sched.get(n, []):
            if act[0] == 'stats': finalize_stats()
            elif act[0] == 'cs2r': cs_stage2_read(act[1])
            elif act[0] == 'cs2w': cs_stage2_write(act[1])
            else: epi_tile(act[1], act[2], act[3])
    assert not pending
    a.lg_wait(('csw', 1))
    a.e('s_barrier')
    a.stamp()
    cs_stage2_read(1)
    cs_stage2_write(1)
    a.lg_wait(('cs3', 1))
    for i in range(3):
        epi_tile(1, i, 0)
        epi_tile(1, i, 1)
    a.e('s_waitcnt vmcnt(0)') if a.stamps_on else None
    a.stamp()
    a.dump_stamps()
    a.label(end)
    a.e('s_endpgm')
```

```python
from asmlib import *
from k1 import *

BIG = 0xF149F2CA
KOFF = 0; VOFF = 16384; ONES = 32768
K2_LDS = 32768 + 1024

def attn_body(a, ld_flags='', st_flags=''):
    a.e('v_lshlrev_b32 v8, 4, v1')
    a.e('s_lshl_b32 s24, s22, 16')
    a.e('s_lshl_b32 s25, s21, 3\ns_lshl_b32 s26, s20, 2\ns_add_u32 s25, s25, s26')
    for t in range(4):
        a.e(f's_add_i32 s26, s25, {t - 8}\ns_max_i32 s26, s26, 0\ns_lshl_b32 s26, s26, 10\ns_add_u32 s26, s26, s24')
        a.e(f's_lshl_b32 s27, s20, 12\ns_add_u32 m0, s27, {KOFF + t*1024}')
        a.e(f's_add_u32 s28, s26, {WS_K}')
        a.vmem(f'buffer_load_dwordx4 v8, s[16:19], s28 offen {ld_flags} lds', 'kv')
        a.e(f's_add_u32 m0, s27, {VOFF + t*1024}')
        a.e(f's_add_u32 s28, s26, {WS_V}')
        a.vmem(f'buffer_load_dwordx4 v8, s[16:19], s28 offen {ld_flags} lds', 'kv')
    QA, QB = 12, 16
    a.e('s_lshl_b32 s26, s21, 3\ns_lshl_b32 s27, s20, 1\ns_add_u32 s26, s26, s27')
    a.e('s_mov_b32 s29, s26')
    a.e('s_lshl_b32 s26, s26, 10\ns_add_u32 s26, s26, s24')
    a.vmem(f'buffer_load_dwordx4 v[{QA}:{QA+3}], v8, s[16:19], s26 offen {ld_flags}', 'q')
    a.vmem(f'buffer_load_dwordx4 v[{QB}:{QB+3}], v8, s[16:19], s26 offen offset:1024 {ld_flags}', 'q')
    a.e('v_mov_b32 v9, 0x3f803f80')
    a.e(f'v_lshlrev_b32 v10, 2, v0\nv_add_u32 v10, {ONES}, v10')
    a.lds('ds_write_b32 v10, v9', 'ones')
    a.e('v_and_b32 v2, 31, v1\nv_lshrrev_b32 v3, 5, v1\nv_lshlrev_b32 v3, 2, v3\nv_sub_u32 v2, v2, v3')
    for r in range(16):
        cst = 8 * (r >> 2) + (r & 3)
        a.e(f'v_cmp_le_i32 s[{32+2*r}:{33+2*r}], {cst}, v2')
    MD, ME = 20, 36
    a.e(f'v_mov_b32 v4, {BIG:#x}')
    a.e('v_mov_b32 v5, 0')
    for r in range(16):
        a.e(f'v_cndmask_b32 v{MD+r}, v4, v5, s[{32+2*r}:{33+2*r}]')
    for r in range(16):
        a.e(f'v_cndmask_b32 v{ME+r}, v5, v4, s[{32+2*r}:{33+2*r}]')
    a.e(f's_lshl_b32 s27, s20, 11\nv_add_u32 v6, s27, v8')
    a.e('v_bfe_u32 v2, v1, 2, 2\nv_lshrrev_b32 v3, 5, v1\nv_lshl_add_u32 v2, v3, 2, v2')
    a.e('v_lshlrev_b32 v2, 5, v2')
    a.e('v_and_b32 v3, 1, v1\nv_lshl_add_u32 v2, v3, 4, v2')
    a.e('v_bfe_u32 v3, v1, 1, 1\nv_lshl_add_u32 v2, v3, 3, v2')
    a.e(f'v_add_u32 v2, s27, v2\nv_add_u32 v7, {VOFF}, v2')
    a.e('v_bfe_u32 v3, v1, 4, 1\nv_cmp_eq_u32 s[64:65], 1, v3')
    a.e(f'v_and_b32 v3, 15, v1\nv_lshlrev_b32 v3, 3, v3\nv_add_u32 v11, {ONES}, v3')
    a.vm_wait('kv')
    a.lg_drain()
    a.e('s_barrier')
    a.e('s_lshl_b32 s30, s20, 1\ns_sub_u32 s30, 8, s30\ns_cmp_eq_u32 s21, 0\ns_cselect_b32 s30, s30, 0')
    KF = 52
    for j in range(10):
        a.lds(f'ds_read_b128 v[{KF+4*j}:{KF+4*j+3}], v6 offset:{KOFF + j*1024}', ('k', j))
    SB = [92, 108, 124, 140]
    MA, MB = 156, 157
    a.e(f'v_mov_b32 v{MA}, v4\nv_mov_b32 v{MB}, v4')
    a.vm_wait('q')
    work = []
    for j in range(10):
        if j <= 8: work.append((j, 0))
        if j >= 1: work.append((j, 1))
    def cmask(j, which):
        jj = j - which
        return MD if jj == 8 else (ME if jj == 0 else None)
    Q = [QA, QB]; M = [MA, MB]
    def guard_begin(j):
        if j >= 8: return None
        lab = a.newlabel('Lg')
        a.e(f's_cmp_gt_u32 s30, {j}\ns_cbranch_scc1 {lab}_stub')
        a.stubs.append(lab)
        return lab
    def p1_mfma(idx):
        j, wch = work[idx]; sb = SB[idx % 4]; cm = cmask(j, wch)
        cin = '0' if cm is None else f'v[{cm}:{cm+15}]'
        a.lg_wait(('k', j))
        a.e(f'v_mfma_f32_32x32x16_bf16 v[{sb}:{sb+15}], v[{KF+4*j}:{KF+4*j+3}], v[{Q[wch]}:{Q[wch]+3}], {cin}')
    def p1_max(idx):
        j, wch = work[idx]; sb = SB[idx % 4]; m = M[wch]
        lab = guard_begin(j)
        for q in range(8):
            a.e(f'v_max3_f32 v{m}, v{sb+2*q}, v{sb+2*q+1}, v{m}')
        if lab: a.label(lab)
    LOOK = 2
    for idx in range(len(work) + LOOK):
        if idx < len(work): p1_mfma(idx)
        if idx >= LOOK:
            if idx >= len(work) or idx == LOOK: a.e('s_nop 7\ns_nop 3')
            p1_max(idx - LOOK)
    for m in M:
        a.e(f'v_mov_b32 v2, v{m}\ns_nop 1\nv_permlane32_swap_b32 v{m}, v2\nv_max_f32 v{m}, v{m}, v2\nv_sub_f32 v{m}, 0, v{m}')
    CP = [160, 176]; CD = [192, 208]; CE = [MD, ME]
    for wch in range(2):
        for r in range(16): a.e(f'v_mov_b32 v{CP[wch]+r}, v{M[wch]}')
        for r in range(16): a.e(f'v_cndmask_b32 v{CD[wch]+r}, v4, v{M[wch]}, s[{32+2*r}:{33+2*r}]')
    for wch in range(2):
        for r in range(16): a.e(f'v_cndmask_b32 v{CE[wch]+r}, v{M[wch]}, v4, s[{32+2*r}:{33+2*r}]')
    OA = [224, 240]
    VF = [2, 158]
    VT = [[SB[3], SB[3] + 4], [SB[3] + 8, SB[3] + 12]]
    PB = [SB[2], SB[2] + 8]
    first = [True, True]
    def v_reads(j):
        a.e(f'v_add_u32 v2, {j*1024}, v7\nv_cndmask_b32 v2, v2, v11, s[64:65]')
        vt = VT[j & 1]
        for mf in range(2):
            for rd in range(2):
                a.lds(f'ds_read_b64_tr_b16 v[{vt[mf]+2*rd}:{vt[mf]+2*rd+1}], v2 offset:{mf*512 + rd*256}', ('v', j))
    def p2_s(idx):
        j, wch = work[idx]; sb = SB[idx % 2]; jj = j - wch
        ct = CD[wch] if jj == 8 else (CE[wch] if jj == 0 else CP[wch])
        a.e(f'v_mfma_f32_32x32x16_bf16 v[{sb}:{sb+15}], v[{KF+4*j}:{KF+4*j+3}], v[{Q[wch]}:{Q[wch]+3}], v[{ct}:{ct+15}]')
    def p2_rest(idx):
        j, wch = work[idx]; sb = SB[idx % 2]; pb = PB[idx % 2]; vt = VT[j & 1]
        for q in range(16): a.e(f'v_exp_f32 v{sb+q}, v{sb+q}')
        for q in range(8): a.e(f'v_cvt_pk_bf16_f32 v{pb+q}, v{sb+2*q}, v{sb+2*q+1}')
        a.lg_wait(('v', j))
        o = OA[wch]
        cin = '0' if first[wch] else f'v[{o}:{o+15}]'
        first[wch] = False
        a.e('s_nop 0')
        a.e(f'v_mfma_f32_32x32x16_bf16 v[{o}:{o+15}], v[{vt[0]}:{vt[0]+3}], v[{pb}:{pb+3}], {cin}')
        a.e(f'v_mfma_f32_32x32x16_bf16 v[{o}:{o+15}], v[{vt[1]}:{vt[1]+3}], v[{pb+4}:{pb+7}], v[{o}:{o+15}]')
    for r in range(32): a.e(f'v_mov_b32 v{OA[0]+r}, 0')
    first = [False, False]
    seen = set()
    def guarded(fn, idx):
        j = work[idx][0]
        lab = guard_begin(j)
        fn(idx)
        if lab: a.label(lab)
    v_reads(0); seen.add(0)
    guarded(p2_s, 0)
    for idx in range(len(work)):
        if idx + 1 < len(work):
            j1 = work[idx + 1][0]
            if j1 not in seen: v_reads(j1); seen.add(j1)
            guarded(p2_s, idx + 1)
        else:
            a.e('s_nop 7\ns_nop 3')
        a.lg_wait(('v', work[idx][0]))
        guarded(p2_rest, idx)
    a.e('s_nop 7\ns_nop 7')
    a.e(f's_lshl_b32 s26, s29, 5\ns_add_u32 s26, s26, s22\ns_lshl_b32 s26, s26, 10\ns_add_u32 s26, s26, {WS_O}')
    for wch in range(2):
        o = OA[wch]
        a.e(f'v_rcp_f32 v2, v{o+8}\ns_nop 0')
        for q in range(8): a.e(f'v_mul_f32 v{o+q}, v{o+q}, v2')
        for q in range(4): a.e(f'v_cvt_pk_bf16_f32 v{o+8+q}, v{o+2*q}, v{o+2*q+1}') if False else None
        b = SB[wch]
        for q in range(4): a.e(f'v_cvt_pk_bf16_f32 v{b+q}, v{o+2*q}, v{o+2*q+1}')
        a.vmem(f'buffer_store_dwordx4 v[{b}:{b+3}], v8, s[16:19], s26 offen {st_flags}', 'ost')
        if wch == 0: a.e(f's_add_u32 s26, s26, {32*1024}')

def phase2(a, name):
    header(a, name)
    end = f'{name}_end'
    a.e(f's_cmp_ge_u32 s2, 256\ns_cbranch_scc1 {end}')
    a.e('s_load_dwordx2 s[66:67], s[0:1], 64')
    a.e('v_and_b32 v1, 63, v0\nv_lshrrev_b32 v2, 6, v0')
    a.e('s_and_b32 s32, s2, 7\ns_lshr_b32 s33, s2, 3')
    a.e('v_readfirstlane_b32 s20, v2')
    a.e('s_lshl_b32 s22, s32, 2\ns_and_b32 s34, s33, 3\ns_add_u32 s22, s22, s34\ns_lshr_b32 s21, s33, 2')
    a.e('s_waitcnt lgkmcnt(0)')
    srd(a, 16, 66, WS_SIZE)
    attn_body(a)
    a.label(end)
    a.e('s_endpgm')
    a.emit_stubs()
```

```python
from asmlib import *
from k1 import *

BST = 16384
NB = 8
RED = NB * BST
K3_LDS = NB * BST
NSTEP = 59
NSTG = (NSTEP + 3) // 4

def gemm2_body(a, ld_flags='', pre=None):
    a.e('s_and_b32 s23, s20, 1\ns_lshr_b32 s24, s20, 1')
    a.e('s_lshl_b32 s25, s21, 1\ns_add_u32 s25, s25, s23')
    a.e(f's_mul_i32 s26, s25, 86\ns_mul_i32 s27, s24, 43\ns_add_u32 s26, s26, s27\ns_lshl_b32 s26, s26, 10\ns_add_u32 s26, s26, {WS_H}')
    a.e(f's_lshl_b32 s28, s25, 5\ns_lshl_b32 s27, s24, 4\ns_add_u32 s28, s28, s27\ns_lshl_b32 s28, s28, 10\ns_add_u32 s28, s28, {WS_O}')
    a.e('v_lshlrev_b32 v8, 4, v1')
    a.e('v_lshrrev_b32 v2, 3, v1\nv_lshlrev_b32 v2, 10, v2')
    a.e('v_bfe_u32 v3, v1, 4, 1\nv_lshlrev_b32 v3, 2, v3\nv_and_b32 v4, 7, v1\nv_xor_b32 v3, v3, v4')
    a.e('v_lshl_add_u32 v9, v3, 4, v2')
    a.e(f's_mul_i32 s30, s24, {43*16*1024}\ns_lshl_b32 s31, s22, 7\ns_add_u32 s30, s30, s31')
    a.e(f's_lshl_b32 s32, s24, 18\ns_add_u32 s32, s32, s31')
    a.e('s_lshl_b32 s33, s23, 15\ns_add_u32 s30, s30, s33\ns_add_u32 s32, s32, s33')
    a.e('s_lshl_b32 s34, s24, 13\ns_lshl_b32 s35, s23, 12\ns_add_u32 s34, s34, s35')
    def dma_stage(s):
        for uu in range(2):
            tl = 4 * s + uu
            kinds = []
            for rg in range(2):
                t = tl + 2 * rg
                kinds.append('w2' if t < 43 else ('wo' if t < NSTEP else None))
            for hf in range(2):
                m0v = (s % NB) * BST + uu * 2048 + hf * 1024
                def emit(kind, rgadj):
                    if kind == 'w2':
                        off = (tl * 16 + hf * 8) * 1024
                        a.e(f's_add_u32 s36, s30, {off}')
                        return 's[8:11]'
                    else:
                        off = ((tl - 43) * 16 + hf * 8) * 1024
                        a.e(f's_add_u32 s36, s32, {off & 0xffffffff}')
                        return 's[12:15]'
                a.e(f's_add_u32 m0, s34, {m0v}')
                if kinds[0] == kinds[1]:
                    sr = emit(kinds[0], 0)
                    a.vmem(f'buffer_load_dwordx4 v9, {sr}, s36 offen lds', ('b', s))
                else:
                    l1 = a.newlabel('Lb'); l2 = a.newlabel('Lb')
                    a.e(f's_cmp_eq_u32 s23, 0\ns_cbranch_scc0 {l1}')
                    sr = emit(kinds[0], 0)
                    a.e(f'buffer_load_dwordx4 v9, {sr}, s36 offen lds')
                    a.e(f's_branch {l2}')
                    a.label(l1)
                    if kinds[1] is not None:
                        sr = emit(kinds[1], 0)
                        a.e(f'buffer_load_dwordx4 v9, {sr}, s36 offen lds')
                    else:
                        sr = emit('wo', 0)
                        a.e(f'buffer_load_dwordx4 v9, {sr}, s36 offen lds')
                    a.label(l2)
                    a.vm.append(('b', s))
    a.e('v_lshrrev_b32 v2, 5, v1\nv_bfe_u32 v3, v1, 2, 2\nv_lshl_add_u32 v2, v2, 2, v3\nv_lshlrev_b32 v2, 7, v2')
    a.e('v_bfe_u32 v4, v1, 4, 1\nv_lshlrev_b32 v4, 5, v4\nv_and_b32 v5, 3, v1\nv_lshl_add_u32 v4, v5, 3, v4\nv_add_u32 v2, v2, v4')
    a.e('s_lshl_b32 s35, s24, 13\nv_add_u32 v2, s35, v2')
    a.e('v_bfe_u32 v3, v1, 3, 1\nv_lshlrev_b32 v3, 6, v3')
    a.e('v_add_u32 v10, v2, v3')
    a.e('v_xor_b32 v3, 64, v3\nv_add_u32 v11, v2, v3')
    a.e('v_add_u32 v12, 65536, v10\nv_add_u32 v13, 65536, v11')
    for s in range(min(NB, NSTG) - 1): dma_stage(s)
    for t in range(43):
        if t % 4 == 0 and t: a.e('s_add_u32 s26, s26, 4096')
        a.vmem(f'buffer_load_dwordx4 a[{4*t}:{4*t+3}], v8, s[16:19], s26 offen offset:{(t%4)*1024} {ld_flags}', ('a', t))
        if len(a.vm) >= 60: a.vm_wait(a.vm[4])
    if pre: pre()
    for t in range(16):
        if t % 4 == 0 and t: a.e('s_add_u32 s28, s28, 4096')
        a.vmem(f'buffer_load_dwordx4 a[{172+4*t}:{172+4*t+3}], v8, s[16:19], s28 offen offset:{(t%4)*1024} {ld_flags}', ('a', 43 + t))
        if len(a.vm) >= 60: a.vm_wait(a.vm[4])
    a.e('v_and_b32 v2, 31, v1\nv_lshlrev_b32 v2, 10, v2\nv_lshrrev_b32 v3, 5, v1\nv_lshl_add_u32 v14, v3, 3, v2')
    a.e('s_lshl_b32 s37, s25, 15\ns_lshl_b32 s38, s22, 7\ns_add_u32 s37, s37, s38\ns_lshl_b32 s38, s24, 6\ns_add_u32 s37, s37, s38')
    XR = 16
    for g in range(4):
        a.vmem(f'buffer_load_dwordx2 v[{XR+2*g}:{XR+2*g+1}], v14, s[4:7], s37 offen offset:{16*g}', 'xr')
    ACC = [32, 48]; WF = [64, 72]
    WF = [64, 72, 80]
    def read_b(t, i):
        s, u = divmod(t, 4)
        base = (s % NB) * BST + u * 2048
        reg = (10 + i) if base < 65536 else (12 + i)
        off = base & 0xffff
        for rd in range(2):
            r = WF[t % 3] + 4 * i + 2 * rd
            a.lds(f'ds_read_b64_tr_b16 v[{r}:{r+1}], v{reg} offset:{off + rd*1024}', ('rb', t, i))
    a.vm_wait(('b', 0))
    a.e('s_barrier')
    read_b(0, 0); read_b(0, 1)
    for t in range(NSTEP):
        s, u = divmod(t, 4)
        if u == 3 and s + 1 < NSTG:
            a.vm_wait(('b', s + 1))
            a.e('s_barrier')
            if s + NB - 1 < NSTG: dma_stage(s + NB - 1)
        a.vm_wait(('a', t))
        for i in range(2):
            w = WF[t % 3] + 4 * i
            a.lg_wait(('rb', t, i))
            cin = '0' if t == 0 else f'v[{ACC[i]}:{ACC[i]+15}]'
            a.e(f'v_mfma_f32_32x32x16_bf16 v[{ACC[i]}:{ACC[i]+15}], v[{w}:{w+3}], a[{4*t}:{4*t+3}], {cin}')
            if t + 1 < NSTEP: read_b(t + 1, i)
    a.lg_drain()
    a.e('s_barrier')
    a.e('s_nop 7\ns_nop 7')
    a.e('s_lshl_b32 s35, s20, 12\nv_add_u32 v2, s35, v8')
    a.e('s_xor_b32 s36, s20, 2\ns_lshl_b32 s36, s36, 12\nv_add_u32 v3, s36, v8')
    l0 = a.newlabel('Lr'); l1 = a.newlabel('Lr')
    a.e(f's_cmp_eq_u32 s24, 0\ns_cbranch_scc0 {l0}')
    for q in range(4): a.e(f'ds_write_b128 v2, v[{ACC[1]+4*q}:{ACC[1]+4*q+3}] offset:{q*1024}')
    a.e(f's_branch {l1}')
    a.label(l0)
    for q in range(4): a.e(f'ds_write_b128 v2, v[{ACC[0]+4*q}:{ACC[0]+4*q+3}] offset:{q*1024}')
    for r in range(16): a.e(f'v_mov_b32 v{ACC[0]+r}, v{ACC[1]+r}')
    a.label(l1)
    a.e('s_waitcnt lgkmcnt(0)\ns_barrier')
    R = 64
    for q in range(4): a.e(f'ds_read_b128 v[{R+4*q}:{R+4*q+3}], v3 offset:{q*1024}')
    a.vm_wait('xr')
    a.e('s_waitcnt lgkmcnt(0)')
    for r in range(16): a.e(f'v_add_f32 v{ACC[0]+r}, v{ACC[0]+r}, v{R+r}')
    for g in range(4):
        for q in range(2):
            x = XR + 2 * g + q; r = ACC[0] + 4 * g + 2 * q
            a.e(f'v_lshlrev_b32 v2, 16, v{x}\nv_and_b32 v3, 0xffff0000, v{x}')
            a.e(f'v_add_f32 v{r}, v{r}, v2\nv_add_f32 v{r+1}, v{r+1}, v3')
    for g in range(4):
        for q in range(2):
            r = ACC[0] + 4 * g + 2 * q
            a.e(f'v_cvt_pk_bf16_f32 v{R+2*g+q}, v{r}, v{r+1}')
    for g in range(4):
        a.vmem(f'buffer_store_dwordx2 v[{R+2*g}:{R+2*g+1}], v14, s[92:95], s37 offen offset:{16*g}', 'ost')

def phase3(a, name):
    header(a, name)
    end = f'{name}_end'
    a.e(f's_cmp_ge_u32 s2, 256\ns_cbranch_scc1 {end}')
    a.e('s_load_dwordx2 s[60:61], s[0:1], 0')
    a.e('s_load_dwordx2 s[62:63], s[0:1], 16')
    a.e('s_load_dwordx4 s[64:67], s[0:1], 40')
    a.e('s_load_dwordx2 s[68:69], s[0:1], 64')
    a.e('v_and_b32 v1, 63, v0\nv_lshrrev_b32 v2, 6, v0')
    a.e('s_and_b32 s32, s2, 7\ns_lshr_b32 s33, s2, 3')
    a.e('v_readfirstlane_b32 s20, v2')
    a.e('s_lshl_b32 s21, s32, 2\ns_lshr_b32 s34, s33, 3\ns_add_u32 s21, s21, s34\ns_and_b32 s22, s33, 7')
    a.e('s_waitcnt lgkmcnt(0)')
    srd(a, 4, 60, 2 << 20)
    srd(a, 8, 64, 1376 * 512 * 2)
    srd(a, 12, 62, 512 * 512 * 2)
    srd(a, 16, 68, WS_SIZE)
    srd(a, 92, 66, 2 << 20)
    gemm2_body(a)
    a.label(end)
    a.e('s_endpgm')
    a.emit_stubs()
```

```python
from build import *
import k1, k2, k3
NAME = 'parallel_sum__sliding_block__dense_activation_relu__prompt'
ks = [('p1_kernel', lambda a, n: k1.phase1(a, n), 256, 256, k1.K1_LDS, 384, 256),
      ('p2_kernel', lambda a, n: k2.phase2(a, n), 256, 256, k2.K2_LDS, 256, 256),
      ('p3_kernel', lambda a, n: k3.phase3(a, n), 256, 256, k3.K3_LDS, 512, 256)]
build(ks, 'v1.s')
```

```python
from build import *
import k1, k2, k3
def empty(a, n):
    k1.header(a, n); a.e('s_endpgm')
base = [('p1_kernel', lambda a, n: k1.phase1(a, n), 256, 256, k1.K1_LDS, 384, 256),
      ('p2_kernel', lambda a, n: k2.phase2(a, n), 256, 256, k2.K2_LDS, 256, 256),
      ('p3_kernel', lambda a, n: k3.phase3(a, n), 256, 256, k3.K3_LDS, 512, 256)]
build(base, 'c0.s')
build(base + [('e1_kernel', empty, 256, 256, 0, 32, 32)], 'c1.s')
build(base + [('e%d_kernel' % i, empty, 256, 256, 0, 32, 32) for i in range(1, 5)], 'c4.s')
```

```python
import re

class Asm:
    def __init__(self):
        self.lines = []
        self.vm = []
        self.lg = []
        self.uid = 0
        self.stubs = []
        self.vm_ever = set(); self.lg_ever = set(); self.all_vm = []
    t = 0
    pipe = 0
    def _tick(self, l):
        op = l.split(None, 1)[0]
        if op.endswith(':') or op.startswith(('.', ';')): return
        if op.startswith('v_mfma'):
            dur = 32 if '32x32' in op else (16 if '16x16' in op else 8)
            st = max(self.t, self.pipe)
            self.pipe = st + dur; self.t = st + 8
        elif op in ('v_exp_f32', 'v_rcp_f32', 'v_sqrt_f32', 'v_rsq_f32', 'v_log_f32'): self.t += 8
        elif op.startswith(('v_pk_fma', 'v_pk_mul', 'v_pk_add', 'v_dot2')): self.t = max(self.t, self.pipe) + 8
        elif op == 's_nop': self.t += 4 * (int(l.split()[1], 0) + 1)
        elif op == 's_barrier': self.t += 20
        else: self.t += 4
    def e(self, s):
        for l in s.split('\n'):
            l = l.strip()
            if l:
                self.lines.append(l); self._tick(l)
    def c(self, s):
        self.lines.append('; ' + s)
    def label(self, name):
        self.lines.append(name + ':')
    def newlabel(self, p='L'):
        self.uid += 1
        return f'{p}_{self.uid}'
    def emit_stubs(self):
        for lab in self.stubs:
            self.label(lab + '_stub')
            self.e(f's_nop 7\ns_nop 7\ns_branch {lab}')
        self.stubs = []
    def vmem(self, s, tag=None):
        self.e(s); self.vm.append(tag); self.vm_ever.add(tag); self.all_vm.append(tag)
    def vm_count_after(self, tags):
        if not isinstance(tags, (list, set)): tags = [tags]
        last = -1
        for i, t in enumerate(self.vm):
            if t in tags: last = i
        if last < 0: return None
        return len(self.vm) - 1 - last
    def vm_wait(self, tags, extra=''):
        for t in (tags if isinstance(tags, (list, set)) else [tags]):
            assert t in self.vm_ever or t in self.vm, f'vm_wait on never-issued tag {t}'
        n = self.vm_count_after(tags)
        if n is None: return
        n = min(n, 63)
        self.e(f's_waitcnt vmcnt({n})' + extra)
        self.vm = self.vm[len(self.vm) - n:] if n > 0 else []
    def vm_drain(self):
        self.e('s_waitcnt vmcnt(0)'); self.vm = []
    def lds(self, s, tag=None):
        self.e(s); self.lg.append(tag); self.lg_ever.add(tag)
    def lg_wait(self, tags):
        if not isinstance(tags, (list, set)): tags = [tags]
        for t in tags: assert t in self.lg_ever, f'lg_wait on never-issued tag {t}'
        last = -1
        for i, t in enumerate(self.lg):
            if t in tags: last = i
        if last < 0: return
        n = len(self.lg) - 1 - last
        n = min(n, 15)
        self.e(f's_waitcnt lgkmcnt({n})')
        self.lg = self.lg[len(self.lg) - n:] if n > 0 else []
    def lg_drain(self):
        self.e('s_waitcnt lgkmcnt(0)'); self.lg = []
    nst = 0
    stamps_on = False
    stamp_mode = 'sgpr'
    def stamp(self):
        if not self.stamps_on: return
        if self.stamp_mode == 'agpr':
            self.e(('s_memrealtime' if getattr(self, 'realtime', False) else 's_memtime') + ' s[78:79]\ns_waitcnt lgkmcnt(0)')
            self.lg = []
            self.e(f'v_accvgpr_write_b32 a{236 + self.nst}, s78')
            self.nst += 1
            assert self.nst <= 20
            return
        self.e('s_memtime s[70:71]\ns_waitcnt lgkmcnt(0)')
        self.lg = []
        self.e(f's_mov_b32 s{72 + self.nst}, s70')
        self.nst += 1
    def dump_stamps(self, per_wg=32):
        if not self.stamps_on: return
        self.e('s_load_dwordx2 s[92:93], s[0:1], 56\ns_waitcnt lgkmcnt(0)')
        self.e('s_mov_b32 s96, s92\ns_and_b32 s97, s93, 0xffff\ns_mov_b32 s98, 0x100000\ns_mov_b32 s99, 0x20000')
        self.e(f's_mul_i32 s94, s2, {per_wg*4}')
        self.e('v_cmp_eq_u32 vcc, 0, v0\ns_and_saveexec_b64 s[100:101], vcc')
        lab = self.newlabel('Lst')
        self.e(f's_cbranch_execz {lab}')
        self.e('v_mov_b32 v3, 0')
        for k in range(self.nst):
            self.e(f'v_mov_b32 v2, s{72+k}' if self.stamp_mode != 'agpr' else f'v_accvgpr_read_b32 v2, a{236+k}')
            self.e(f'buffer_store_dword v2, v3, s[96:99], s94 offen offset:{4*k}')
        self.label(lab)
        self.e('s_mov_b64 exec, s[100:101]')
    def text(self):
        return '\n'.join(self.lines) + '\n'

_reg = re.compile(r'\b([vas])\[(\d+):(\d+)\]|\b([vas])(\d+)\b')
def regs_of(op):
    out = set()
    for m in _reg.finditer(op):
        if m.group(1):
            for r in range(int(m.group(2)), int(m.group(3)) + 1): out.add((m.group(1), r))
        else:
            out.add((m.group(4), int(m.group(5))))
    if re.search(r'\bvcc\b', op): out.add(('s', 'vcc'))
    if re.search(r'\bm0\b', op): out.add(('s', 'm0'))
    if re.search(r'\bexec\b', op): out.add(('s', 'exec'))
    return out

TRANS = ('v_exp_f32', 'v_log_f32', 'v_rcp_f32', 'v_rsq_f32', 'v_sqrt_f32', 'v_sin_f32', 'v_cos_f32')
def parse(line):
    l = line.split(';')[0].strip()
    if not l or l.endswith(':') or l.startswith('.'): return None
    parts = l.split(None, 1)
    op = parts[0]
    ops = [o.strip() for o in parts[1].split(',')] if len(parts) > 1 else []
    d = dict(op=op, text=l)
    is_mfma = op.startswith('v_mfma')
    is_valu = op.startswith('v_') and not is_mfma
    d['mfma'] = is_mfma; d['valu'] = is_valu
    d['trans'] = op.replace('_e32', '').replace('_e64', '') in TRANS
    wr = set(); rd = set()
    if is_mfma:
        wr = regs_of(ops[0]); d['A'] = regs_of(ops[1]); d['B'] = regs_of(ops[2]); d['C'] = regs_of(ops[3])
        rd = d['A'] | d['B'] | d['C']
        d['passes'] = 8 if '32x32' in op else 4
    elif is_valu:
        if op.startswith('v_cmp'):
            wr = regs_of(ops[0]); rd = set().union(*[regs_of(o) for o in ops[1:]]) if len(ops) > 1 else set()
        elif op.startswith('v_permlane') and 'swap' in op:
            wr = regs_of(ops[0]) | regs_of(ops[1]); rd = set(wr)
        elif op.startswith('v_readfirstlane') or op.startswith('v_readlane'):
            wr = regs_of(ops[0]); rd = regs_of(ops[1])
        else:
            wr = regs_of(ops[0]); rd = set().union(*[regs_of(o) for o in ops[1:]]) if len(ops) > 1 else set()
            if op.startswith(('v_fmac', 'v_dot2c', 'v_pk_fmac')): rd |= wr
            if op.startswith('v_cndmask') and len(ops) == 3: rd.add(('s', 'vcc'))
            if op.startswith(('v_add_co', 'v_sub_co', 'v_addc_co')): wr |= regs_of(ops[1])
    elif op.startswith('ds_'):
        if op.startswith('ds_read') or 'rtn' in op or op.startswith('ds_bpermute') or op.startswith('ds_swizzle'):
            wr = regs_of(ops[0]); rd = set().union(*[regs_of(o) for o in ops[1:]])
        else:
            rd = set().union(*[regs_of(o) for o in ops])
        d['ds'] = True
    elif op.startswith(('buffer_', 'global_')):
        d['vmem'] = True
        if 'load' in op and ' lds' not in l:
            wr = regs_of(ops[0]); rd = set().union(*[regs_of(o) for o in ops[1:]])
        else:
            rd = set().union(*[regs_of(o) for o in ops]) if ops else set()
        if ' lds' in l: rd.add(('s', 'm0'))
        d['store'] = 'store' in op
        d['wide'] = d['store'] and ('x4' in op or 'x3' in op)
    elif op.startswith('s_'):
        d['salu'] = True
        if op in ('s_waitcnt', 's_barrier', 's_nop', 's_endpgm', 's_branch', 's_setprio', 's_sleep') or op.startswith('s_cbranch'):
            pass
        elif op.startswith('s_cmp'):
            rd = set().union(*[regs_of(o) for o in ops])
        else:
            wr = regs_of(ops[0]) if ops else set(); rd = set().union(*[regs_of(o) for o in ops[1:]]) if len(ops) > 1 else set()
    d['wr'] = wr; d['rd'] = rd
    d['ws'] = 1
    if op == 's_nop': d['ws'] = int(ops[0], 0) + 1
    return d

def check_hazards(lines, verbose=True):
    ins = []
    for i, l in enumerate(lines):
        p = parse(l)
        if p: p['ln'] = i; ins.append(p)
    errs = []
    for i, a in enumerate(ins):
        dist = 0
        for j in range(i + 1, min(i + 24, len(ins))):
            b = ins[j]
            need = 0; why = ''
            def chk(n, w):
                nonlocal need, why
                if n > need: need = n; why = w
            if a['valu']:
                vw = {r for r in a['wr'] if r[0] in 'va'}
                sw = {r for r in a['wr'] if r[0] == 's'}
                if b['mfma'] and (vw & b['rd']): chk(2, 'VALU->MFMA')
                if b['valu'] and b['op'].startswith('v_permlane') and (vw & b['rd']): chk(2, 'VALU->permlane')
                if b['valu'] and b['op'].startswith(('v_readfirstlane', 'v_readlane')) and (vw & b['rd']): chk(1, 'VALU->readlane')
                if a['trans'] and b['valu'] and not b['trans'] and (vw & b['rd']): chk(1, 'trans->VALU')
                if a['trans'] and b['mfma'] and (vw & b['rd']): chk(2, 'trans->MFMA')
                if sw and b.get('vmem') and (sw & b['rd']): chk(5, 'VALU sgpr->VMEM')
                if sw and b['valu'] and (sw & b['rd']): chk(2, 'VALU sgpr->VALU')
                if sw and b.get('salu') and (sw & b['rd']): chk(3, 'VALU sgpr->SALU (pad)')
                if 'dpp' in b['text'] or 'row_' in b['text']:
                    if vw & b['rd']: chk(2, 'VALU->DPP')
                if ('op_sel' in a['text'] and not a['op'].startswith('v_pk')) and b['valu'] and (vw & b['rd']): chk(1, 'opsel')
            if a['op'].startswith('v_dot') and not b['op'].startswith('v_dot') and ((a['wr'] & b['rd']) or (a['wr'] & b['wr'])): chk(3, 'DOT->other')
            if a['mfma']:
                P = a['passes']
                D = a['wr']
                raw = {8: 12, 4: 8}[P]
                if b['mfma']:
                    if (D & b['C']) and not (D == b['C'] and b['wr'] == D or D == b['C']): chk({8: 10, 4: 6}[P], 'MFMA D->C partial')
                    if D & (b['A'] | b['B']): chk(raw, 'MFMA D->A/B')
                elif b['valu'] and ((D & b['rd']) or (D & b['wr'])): chk(raw, 'MFMA D->VALU')
                elif (b.get('ds') or b.get('vmem')) and ((D & b['rd']) or (D & b['wr'])): chk(raw, 'MFMA D->MEM')
                if b['valu'] and (a['C'] & b['wr']) and not (D & b['wr']): chk({8: 7, 4: 3}[P], 'MFMA C WAR')
            if a.get('wide') and b['valu']:
                data = regs_of(a['text'].split(None, 1)[1].split(',')[0]) if a['op'].startswith('buffer') else set()
                if data & b['wr']: chk(2, 'store data WAR')
            if a.get('salu') and ('s', 'm0') in a['wr'] and b.get('vmem') and ('s', 'm0') in b['rd']: chk(1, 'M0->DMA')
            if need > dist:
                errs.append((a['ln'], b['ln'], why, need, dist, a['text'], b['text']))
            dist += b['ws']
            if dist >= 20: break
    if verbose:
        for e in errs[:40]:
            print(f'HAZARD {e[2]} need {e[3]} have {e[4]}: [{e[0]}] {e[5]}  ->  [{e[1]}] {e[6]}')
    return errs


from collections import deque
class VStream:
    def __init__(self, a, pace=80):
        self.a = a; self.pace = pace; self.q = []; self.next_t = 0; self.seq = 0
    def add(self, tag, fn, cost=None, dl=0):
        self.seq += 1
        self.q.append([dl, self.seq, tag, fn, cost or self.pace]); self.q.sort(key=lambda x: (x[0], x[1]))
    def _emit(self, i=0):
        it = self.q.pop(i)
        it[3]()
        self.next_t = self.a.t + it[4]
    def poll(self, n=1):
        for _ in range(n):
            if self.a.t < self.next_t or not self.q: return
            self._emit()
    def force(self, tags):
        if not isinstance(tags, (list, set)): tags = [tags]
        idx = -1
        for i, it in enumerate(self.q):
            if it[2] in tags: idx = i
        for _ in range(idx + 1): self._emit()
    def drain(self):
        while self.q: self._emit()
    def has(self, tag): return any(it[2] == tag for it in self.q)
    def __len__(self): return len(self.q)
```

```python
import sys
from asmlib import *
import fused2, fused3, k1
HDR = open('parallel_sum__sliding_block__dense_activation_relu__prompt.s.ref').read().split('; Override launch')[0]
NAME = 'parallel_sum__sliding_block__dense_activation_relu__prompt_kernel'
def build(path, stamps=False, tog=(), P=None, mod=fused2):
    a = Asm(); a.stamps_on = stamps; a.stamp_mode = 'agpr'; a.realtime = bool((P or {}).get('realtime'))
    mod.fused(a, NAME, tog, P)
    errs = check_hazards(a.lines)
    out = HDR + f'; @launch grid=(256,1,1) block=(256,1,1) lds={mod.LDS_BYTES}\n'
    out += '.amdgcn_target "amdgcn-amd-amdhsa--gfx950"\n.text\n' + a.text()
    out += '.section .rodata,"a"\n.p2align 6\n' + k1.kd(NAME, 512, 256)
    open(path, 'w').write(out)
    print('written', path, len(out), 'hazards:', len(errs), 'stamps', a.nst, 'est', a.t, getattr(a, 'stamp_names', ''))
if __name__ == '__main__':
    build('f3.s', mod=fused3)
    build('f3s.s', stamps=True, mod=fused3)
    build('f3rt.s', stamps=True, mod=fused3, P=dict(realtime=True, stamps=['start','bar0','c7','st0iss','st0ack','p1end','f1ok','hepi','kvbar','pass1','pass2','p3start','t8','t28','t32','t44','p3end','end']))
```

```python
from collections import deque
from asmlib import *
from k1 import f2u, QSCALE, header, kd

WS_Q = 0; WS_K = 2 << 20; WS_V = 4 << 20; WS_H = 6 << 20; WS_O = 12 << 20
WS_F = 15 << 20; WS_S = WS_F + 8192; WS_SIZE = 16 << 20
OOB = 0x7ffffff0
BIG = 0xF149F2CA
NST = 6; WST = 12288
XRING = NST * WST
XSL = 16384
CS_OFF = 157440
CSP = CS_OFF + 3072
STATL = CS_OFF + 6144
KOFF = XRING; VOFF = XRING + 16384; ONES = XRING + 32768
BSLOT = [140288, 107520, 123904, 0, 16384, 32768, 49152, 73728, 90112]
LDS_BYTES = 163840
NSTEP3 = 59; NSTG = 15
S_WAVE = 20; S_RB = 21; S_CB = 22; S_NONCE = 23
P_X, P_WQKV, P_WO, P_BX, P_W1, P_W2, P_OUT, P_DBG, P_WS = 60, 62, 64, 66, 68, 70, 72, 74, 76

def srd(a, s, ptr, size):
    a.e(f's_mov_b32 s{s}, s{ptr}\ns_and_b32 s{s+1}, s{ptr+1}, 0xffff\ns_mov_b32 s{s+2}, {size}\ns_mov_b32 s{s+3}, 0x20000')

class Q:
    def __init__(self): self.q = deque()
    def add(self, item, cost=1): self.q.append((cost, item))
    debt = 0
    def run(self, a, budget):
        if self.debt > 0:
            d = min(self.debt, budget); self.debt -= d; budget -= d
        while self.q and budget > 0:
            cost, it = self.q.popleft()
            if callable(it): it()
            else: a.e(it)
            budget -= cost
        if budget < 0 and budget > -10**8: self.debt = -budget
        return budget
    def drain(self, a):
        self.debt = 0
        self.run(a, 10 ** 9); self.debt = 0
    def __len__(self): return len(self.q)

def poll_check(a, vdata, need, load_txt):
    lab = a.newlabel('Lp')
    a.e(f'v_cmp_ne_u32 vcc, s{S_NONCE}, v{vdata}')
    a.e('s_nop 2')
    a.e(f's_and_b64 s[56:57], vcc, {need or "exec"}')
    a.e(f's_cbranch_scc1 {lab}_stub')
    a.label(lab)
    def stub():
        a.label(lab + '_stub')
        a.e('s_mov_b32 s58, 0')
        a.label(lab + '_loop')
        a.e('s_sleep 1')
        a.e(load_txt)
        a.e('s_waitcnt vmcnt(0)')
        a.e(f'v_cmp_ne_u32 vcc, s{S_NONCE}, v{vdata}')
        a.e('s_add_u32 s58, s58, 1\ns_cmp_gt_u32 s58, 0x40000')
        a.e(f's_cbranch_scc1 {lab}')
        a.e(f's_and_b64 s[56:57], vcc, {need or "exec"}')
        a.e(f's_cbranch_scc1 {lab}_loop')
        a.e(f's_branch {lab}')
    a.stub_fns.append(stub)

def fused(a, name, tog=(), P=None):
    _st = a.stamp
    def stamp(nm):
        sel = (P or {}).get('stamps')
        if sel is None or nm in sel:
            if a.stamps_on: a.stamp_names.append(nm)
            _st()
    a.stamp_names = []
    P = dict(xc=44, wc=72, wc2=100, pace3=30, paceA=72, epi_budget=4, epi_p1=6, epi_fast=8, st0c=12, bc1=80) | (P or {})
    STF = 'sc1'
    a.stub_fns = []; marks = {}; a.marks = marks
    header(a, name)
    end = f'{name}_end'
    vs = VStream(a)
    m0state = [None]
    def set_m0(key, code):
        if m0state[0] != key:
            a.e(code); m0state[0] = key
            return True
        return False
    a.e(f's_cmp_ge_u32 s2, 256\ns_cbranch_scc1 {end}')
    stamp('start')
    a.e('s_load_dwordx16 s[60:75], s[0:1], 0')
    a.e('s_load_dwordx2 s[76:77], s[0:1], 64')
    a.e('s_memtime s[78:79]')
    a.e('v_and_b32 v1, 63, v0\nv_lshrrev_b32 v2, 6, v0')
    a.e('s_and_b32 s32, s2, 7\ns_lshr_b32 s33, s2, 3')
    a.e(f'v_readfirstlane_b32 s{S_WAVE}, v2')
    a.e('v_lshlrev_b32 v8, 4, v1')
    a.e('s_and_b32 s21, s32, 1\ns_lshl_b32 s21, s21, 3\ns_and_b32 s34, s33, 7\ns_add_u32 s21, s21, s34')
    a.e('s_lshr_b32 s22, s32, 1\ns_lshl_b32 s22, s22, 2\ns_lshr_b32 s34, s33, 3\ns_add_u32 s22, s22, s34')
    a.e('v_lshrrev_b32 v2, 3, v1\nv_lshlrev_b32 v2, 10, v2')
    a.e('v_and_b32 v3, 7, v1\nv_lshrrev_b32 v4, 4, v1\nv_xor_b32 v3, v3, v4')
    a.e('v_lshl_add_u32 v9, v3, 4, v2')
    a.e('v_xor_b32 v3, 4, v3\nv_lshl_add_u32 v10, v3, 4, v2')
    a.e('v_add_u32 v11, 14336, v9\nv_add_u32 v12, 21504, v10\nv_add_u32 v10, 7168, v10')
    a.e('s_mov_b32 s35, 43691\ns_movk_i32 s36, 3072')
    for t in range(3):
        a.e(f'v_add_u32 v2, {64*t}, v1' if t else 'v_mov_b32 v2, v1')
        a.e(f'v_mul_u32_u24 v{44+t}, s35, v2\nv_lshrrev_b32 v{44+t}, 19, v{44+t}')
        a.e(f'v_mul_u32_u24 v4, 12, v{44+t}\nv_sub_u32 v4, v2, v4\nv_lshlrev_b32 v{47+t}, 4, v4')
        if t: a.e(f'v_subrev_u32 v{47+t}, {1024*t}, v{47+t}')
        a.e(f'v_mad_u32_u24 v{13+t}, v{44+t}, s36, v{47+t}')
    a.e('s_lshl_b32 s24, s21, 7\ns_lshl_b32 s34, s20, 5\ns_add_u32 s24, s24, s34\ns_lshl_b32 s24, s24, 10')
    a.e('s_mul_i32 s25, s20, 49152\ns_mul_i32 s26, s22, 192\ns_add_u32 s25, s25, s26')
    a.e('s_mul_i32 s27, s20, 3072')
    a.e(f's_lshl_b32 s28, s20, 12\ns_add_u32 s28, s28, {XRING}')
    rotm = P.get('rot', 'rb+cb')
    if rotm == 'rb+cb': a.e('s_add_u32 s29, s21, s22')
    elif rotm == 'rb': a.e('s_mov_b32 s29, s21')
    elif rotm == 'cb': a.e('s_mov_b32 s29, s22')
    elif rotm == 'rb2': a.e('s_lshl_b32 s29, s21, 1')
    elif rotm == 'rb4': a.e('s_lshl_b32 s29, s21, 2')
    else: a.e('s_mov_b32 s29, 0')
    a.e('s_lshl_b32 s30, s21, 7\ns_lshl_b32 s34, s22, 3\ns_add_u32 s30, s30, s34\ns_lshl_b32 s34, s20, 1\ns_add_u32 s31, s30, s34\ns_lshl_b32 s31, s31, 10')
    a.e(f's_or_b32 s34, s2, s20\nv_or_b32 v2, s34, v1\nv_mov_b32 v3, {OOB:#x}\nv_mov_b32 v4, 0\nv_cmp_eq_u32 vcc, 0, v2')
    a.e('s_nop 0\ns_waitcnt lgkmcnt(0)')
    a.e('v_cndmask_b32 v7, v3, v4, vcc')
    srd(a, 4, P_X, 2 << 20)
    srd(a, 8, P_WQKV, 512 * 1536 * 2)

    def dma_x_ops(c):
        ops = []
        for t in range(4):
            def f(t=t):
                if t == 0: a.e(f's_add_u32 s48, s29, {c}\ns_and_b32 s48, s48, 7\ns_lshl_b32 s48, s48, 7\ns_add_u32 s48, s48, s24')
                if set_m0(('x', c), f's_add_u32 m0, s28, {(c % 4) * XSL}') and t: a.e('s_nop 0')
                if t == 0 and a.lines[-1].startswith('s_add_u32 m0'): a.e('s_nop 0')
                a.vmem(f'buffer_load_dwordx4 v{9+t}, s[4:7], s48 offen offset:{1024*t} lds', ('x', c))
            ops.append((('x', c), f))
        return ops
    def dma_w_ops(c):
        ops = []
        for t in range(3):
            def f(t=t):
                if t == 0:
                    a.e(f's_add_u32 s49, s29, {c}\ns_and_b32 s49, s49, 7')
                    if c < 8: a.e(f's_mul_i32 s49, s49, {64*3072}\ns_add_u32 s49, s49, s25')
                    else: a.e(f's_mul_i32 s49, s49, {64*2752}\ns_add_u32 s49, s49, s26')
                if set_m0(('w', c), f's_add_u32 m0, s27, {(c % NST) * WST}'): a.e('s_nop 0')
                if c < 8: a.vmem(f'buffer_load_dwordx4 v{13+t}, s[8:11], s49 offen offset:{1024*t} lds', ('w', c))
                else: a.vmem(f'buffer_load_dwordx4 v{16+t}, s[12:15], s49 offen offset:{1024*t} lds', ('w', c))
            ops.append((('w', c), f))
        return ops
    a.vmem('buffer_load_dwordx4 v[112:115], v8, s[4:7], s31 offen', 'srow')
    a.vmem('buffer_load_dwordx4 v[116:119], v8, s[4:7], s31 offen offset:1024', 'srow')
    for _, f in dma_x_ops(0): f()
    for _, f in dma_w_ops(0): f()
    srd(a, 88, P_DBG, 256)
    a.e('s_or_b32 s78, s78, 1\nv_mov_b32 v5, s78')
    a.vmem('buffer_store_dword v5, v7, s[88:91], 0 offen sc0 sc1', 'nst')
    a.e('v_mov_b32 v7, 0')
    stamp('pro1')
    XC, WC = P['xc'], P['wc']
    vs.next_t = a.t + P.get('pro_gap', 150)
    for c in (1, 2):
        for tg, f in dma_x_ops(c): vs.add(tg, f, XC, dl=4*c)
        for tg, f in dma_w_ops(c): vs.add(tg, f, WC, dl=4*c)
    for tg, f in dma_w_ops(3): vs.add(tg, f, WC, dl=12)
    def E(txt):
        for l in txt.split('\n'):
            a.e(l)
            if not l.startswith(('v_cmp', 's_cmp', 's_add_u32 m0', 's_cselect')): vs.poll()
    E('v_lshrrev_b32 v2, 5, v1\nv_bfe_u32 v3, v1, 2, 2\nv_lshl_add_u32 v3, v2, 3, v3\nv_mul_u32_u24 v3, 192, v3')
    E('v_bfe_u32 v4, v1, 4, 1\nv_lshlrev_b32 v4, 5, v4\nv_and_b32 v5, 3, v1\nv_lshl_add_u32 v4, v5, 3, v4\nv_add_u32 v3, v3, v4')
    E('v_and_b32 v4, 31, v1\nv_bfe_u32 v5, v1, 1, 3\nv_xor_b32 v5, v5, v2\nv_lshlrev_b32 v5, 4, v5')
    E('v_lshlrev_b32 v38, 7, v4\nv_add_u32 v38, s28, v38')
    for j in range(4):
        a.e(f's_add_u32 s34, s20, {j}\ns_and_b32 s34, s34, 3')
        a.e(f's_mul_i32 s35, s34, 3072\nv_add_u32 v{19+j}, s35, v3')
        a.e(f's_lshl_b32 s35, s34, 5\nv_xor_b32 v39, s35, v5\nv_add_u32 v{23+j}, v38, v39')
        vs.poll()
    a.e('s_movk_i32 s37, 2752')
    for t in range(3): E(f'v_mad_u32_u24 v{16+t}, v{44+t}, s37, v{47+t}')
    a.e('s_mul_i32 s34, s20, 44032\ns_add_u32 s26, s26, s34')
    E('v_and_b32 v3, 3, v1\nv_bfe_u32 v38, v1, 2, 1\nv_bfe_u32 v5, v1, 4, 1\nv_xor_b32 v38, v38, v5\nv_or_b32 v3, v3, v38')
    a.e('v_cmp_eq_u32 vcc, 0, v3\nv_mov_b32 v5, 0x3f803f80\ns_nop 0\nv_cndmask_b32 v40, 0, v5, vcc')
    E('v_mov_b32 v41, v40\nv_mov_b32 v42, v40\nv_mov_b32 v43, v40')
    a.e(f's_mul_i32 s34, s20, 384\ns_add_u32 s35, s34, {CS_OFF}')
    a.e('v_lshl_add_u32 v27, v4, 2, s35')
    a.e(f'v_lshlrev_b32 v28, 2, v1\nv_add_u32 v28, {CS_OFF}, v28')
    a.e(f's_add_u32 s35, s34, {CSP}\nv_lshl_add_u32 v29, v1, 2, s35')
    a.e('v_lshlrev_b32 v2, 4, v2\nv_add_u32 v30, s35, v2')
    E('v_lshl_add_u32 v37, v4, 5, v2')
    srd(a, 12, P_W1, 512 * 1376 * 2)
    srd(a, 16, P_WS, WS_SIZE)
    if 'nopf' not in tog:
        a.e('s_getpc_b64 s[50:51]')
        a.label('Lpf_base')
        a.e('s_lshl_b32 s34, s33, 2\ns_add_u32 s34, s34, s20\ns_min_u32 s34, s34, (Lcode_end-Lpf_base)/1024-1\ns_lshl_b32 s34, s34, 10')
        a.e('s_add_u32 s50, s50, s34\ns_addc_u32 s51, s51, 0')
        a.vmem('global_load_dwordx4 v[120:123], v8, s[50:51]', 'pf')
    stamp('pro2')

    WF = [56, 68]; ACC = [128, 176]; CSA = [44, 48, 52]
    NMEAN, RSTD, RS2 = 34, 35, 36
    def read_w(n, i):
        c, j = divmod(n, 4)
        st = (c % NST) * WST
        for rd in range(2):
            r = WF[n & 1] + 4 * i + 2 * rd
            a.lds(f'ds_read_b64_tr_b16 v[{r}:{r+1}], v{19+j} offset:{st + rd*768 + 64*i}', ('rw', n, i))
    def read_xa(n):
        c, j = divmod(n, 4)
        if c < 8: a.lds(f'ds_read_b128 a[{4*n}:{4*n+3}], v{23+j} offset:{(c%4)*XSL}', ('rxa', n))
    epi = Q()
    def cs_flush(part):
        for i in range(3):
            a.lds(f'ds_write_b32 v27, v{CSA[i]} offset:{part*1536 + i*128}', ('csw', part))
    def q_cs_stage2(part):
        def rd():
            for w in range(4): a.lds(f'ds_read_b32 v{80+w}, v28 offset:{part*1536 + w*384}', ('cs2', part))
        def rd2():
            for w in range(4): a.lds(f'ds_read_b32 v{84+w}, v28 offset:{part*1536 + w*384 + 256}', ('cs2', part))
        epi.add(rd, 4); epi.add(rd2, 4)
        epi.add(lambda: a.lg_wait(('cs2', part)), 1)
        for t in ['v_add_f32 v80, v80, v81', 'v_add_f32 v82, v82, v83', 'v_add_f32 v84, v84, v85', 'v_add_f32 v86, v86, v87',
                  'v_add_f32 v80, v80, v82', 'v_add_f32 v84, v84, v86']: epi.add(t)
        epi.add(lambda: a.lds(f'ds_write_b32 v29, v80 offset:{part*1536}', ('cs3', part)))
        def w2():
            a.e('s_mov_b32 exec_hi, 0')
            a.lds(f'ds_write_b32 v29, v84 offset:{part*1536 + 256}', ('cs3', part))
            a.e('s_mov_b32 exec_hi, -1')
        epi.add(w2, 3)
    TSET = [80, 112]
    def q_epi_rd(part, i):
        T_ = TSET[i & 1]
        def rd():
            for g in range(4): a.lds(f'ds_read_b128 v[{T_+4*g}:{T_+4*g+3}], v30 offset:{part*1536 + i*128 + g*32}', ('cs', part, i))
        epi.add(rd, 4)
    def q_epi_tile(part, i):
        acc = ACC[part] + 16 * i; b = 96 + 8 * (i & 1); T_ = TSET[i & 1]
        if part == 0: epi.add(f'v_mul_f32 v{RS2}, s{44+i}, v{RSTD}')
        rs = RS2 if part == 0 else RSTD
        epi.add(lambda: a.lg_wait(('cs', part, i)))
        for q in range(16): epi.add(f'v_fma_f32 v{T_+q}, v{T_+q}, v{NMEAN}, v{acc+q}')
        for q in range(16): epi.add(f'v_mul_f32 v{T_+q}, v{T_+q}, v{rs}')
        for q in range(8): epi.add(f'v_cvt_pk_bf16_f32 v{b+q}, v{T_+2*q}, v{T_+2*q+1}')
        if part == 1:
            for q in range(8): epi.add(f'v_pk_max_i16 v{b+q}, v{b+q}, 0')
        if part == 0:
            def st():
                a.vmem(f'buffer_store_dwordx4 v[{b}:{b+3}], v{31+i}, s[16:19], s{40+i} offen {STF}', 'st0')
                a.e(f's_add_u32 s{40+i}, s{40+i}, 65536')
                a.vmem(f'buffer_store_dwordx4 v[{b+4}:{b+7}], v{31+i}, s[16:19], s{40+i} offen {STF}', 'st0')
            epi.add(st, 3)
        else:
            def st():
                a.e(f's_mul_i32 s34, s22, 3\ns_add_u32 s34, s34, {i}\ns_cmp_ge_u32 s34, 43\ns_cselect_b32 s35, {OOB - 65536:#x}, s43')
                a.vmem(f'buffer_store_dwordx4 v[{b}:{b+3}], v8, s[16:19], s35 offen offset:0 {STF}', 'st1')
                a.vmem(f'buffer_store_dwordx4 v[{b+4}:{b+7}], v8, s[16:19], s35 offen offset:1024 {STF}', 'st1')
                a.e('s_add_u32 s43, s43, 2048')
            epi.add(st, 7)
    def q_epi_all(part):
        q_epi_rd(part, 0); q_epi_rd(part, 1)
        q_epi_tile(part, 0); q_epi_rd(part, 2); q_epi_tile(part, 1); q_epi_tile(part, 2)

    def q_stats():
        epi.add(lambda: a.vm_wait('srow'))
        T = 224
        for r in range(2):
            x = 112 + 4 * r
            for q in range(4):
                epi.add(f'v_lshlrev_b32 v{T+16*r+2*q}, 16, v{x+q}'); epi.add(f'v_and_b32 v{T+16*r+2*q+1}, 0xffff0000, v{x+q}')
        SA = [104, 106]; QA_ = [105, 107]
        for r in range(2):
            b = T + 16 * r
            epi.add(f'v_add_f32 v{SA[r]}, v{b}, v{b+1}'); epi.add(f'v_mul_f32 v{QA_[r]}, v{b}, v{b}')
        for q in range(1, 8):
            for r in range(2):
                b = T + 16 * r
                if q >= 2: epi.add(f'v_add_f32 v{SA[r]}, v{SA[r]}, v{b+q}')
                epi.add(f'v_fma_f32 v{QA_[r]}, v{b+q}, v{b+q}, v{QA_[r]}')
        for ctl in ['row_shr:1 row_mask:0xf bank_mask:0xf bound_ctrl:0', 'row_shr:2 row_mask:0xf bank_mask:0xf bound_ctrl:0',
                    'row_shr:4 row_mask:0xf bank_mask:0xf bound_ctrl:0', 'row_shr:8 row_mask:0xf bank_mask:0xf bound_ctrl:0',
                    'row_bcast:15 row_mask:0xa bank_mask:0xf', 'row_bcast:31 row_mask:0xc bank_mask:0xf']:
            epi.add('s_nop 1\n' + '\n'.join(f'v_add_f32_dpp v{r}, v{r}, v{r} {ctl}' for r in [104, 105, 106, 107]), 5)
        for r in range(2):
            S, Qq = SA[r], QA_[r]
            for t in [f'v_mul_f32 v{S}, 0x3b000000, v{S}', f'v_mul_f32 v{Qq}, 0x3b000000, v{Qq}', f'v_fma_f32 v{Qq}, -v{S}, v{S}, v{Qq}',
                      f'v_max_f32 v{Qq}, 0, v{Qq}', f'v_cvt_pk_bf16_f32 v{S}, v{S}, v{S}', f'v_cvt_pk_bf16_f32 v{Qq}, v{Qq}, v{Qq}',
                      f'v_and_b32 v{Qq}, 0xffff0000, v{Qq}', f'v_add_f32 v{Qq}, {f2u(1e-5):#x}, v{Qq}', f'v_cvt_pk_bf16_f32 v{Qq}, v{Qq}, v{Qq}',
                      f'v_and_b32 v{Qq}, 0xffff0000, v{Qq}', f'v_sqrt_f32 v{Qq}, v{Qq}\nv_and_b32 v{S}, 0xffff, v{S}',
                      f'v_cvt_pk_bf16_f32 v{Qq}, v{Qq}, v{Qq}', f'v_and_b32 v{Qq}, 0xffff0000, v{Qq}', f'v_or_b32 v{108+2*r}, v{S}, v{Qq}']:
                epi.add(t)
    def q_stats2():
        lab = a.newlabel('Ln')
        def nchk():
            a.vm_wait('npoll')
            a.e(f'v_readfirstlane_b32 s{S_NONCE}, v6')
            a.e(f's_nop 3\ns_cmp_eq_u32 s{S_NONCE}, 0\ns_cbranch_scc1 {lab}_stub')
            a.label(lab)
        def nstub():
            a.label(lab + '_stub')
            a.e('s_mov_b32 s58, 0')
            a.label(lab + '_loop')
            a.e('s_sleep 1\nbuffer_load_dword v6, v7, s[88:91], 0 offen sc0 sc1\ns_waitcnt vmcnt(0)')
            a.e(f'v_readfirstlane_b32 s{S_NONCE}, v6')
            a.e(f's_add_u32 s58, s58, 1\ns_cmp_gt_u32 s58, 0x40000\ns_cbranch_scc1 {lab}')
            a.e(f's_cmp_eq_u32 s{S_NONCE}, 0\ns_cbranch_scc1 {lab}_loop\ns_branch {lab}')
        a.stub_fns.append(nstub)
        a.vmem('buffer_load_dword v6, v7, s[88:91], 0 offen sc0 sc1', 'npoll')
        epi.add('s_nop 0', P.get('ndelay', 40))
        epi.add(nchk, 5)
        def fin():
            a.e(f'v_mov_b32 v109, s{S_NONCE}\nv_mov_b32 v111, s{S_NONCE}\nv_cmp_eq_u32 vcc, 63, v1\nv_mov_b32 v2, {OOB:#x}\nv_mov_b32 v3, 0\n'
                f'v_cndmask_b32 v2, v2, v3, vcc\ns_lshr_b32 s34, s31, 7\ns_add_u32 s34, s34, {WS_S}')
            a.vmem(f'buffer_store_dwordx4 v[108:111], v2, s[16:19], s34 offen {STF}', 'strec')
        epi.add(fin, 9)

    def q_store_params():
        epi.add('s_lshl_b32 s39, s21, 2\ns_add_u32 s39, s39, s20', 2)
        for i in range(3):
            epi.add(f's_mul_i32 s34, s22, 3\ns_add_u32 s34, s34, {i}\ns_lshr_b32 s35, s34, 4\ns_and_b32 s34, s34, 15\ns_lshl_b32 s34, s34, 17\n'
                    f's_lshl_b32 s{40+i}, s35, 21\ns_add_u32 s{40+i}, s{40+i}, s34\ns_lshl_b32 s34, s39, 10\ns_add_u32 s{40+i}, s{40+i}, s34\n'
                    f's_cmp_eq_u32 s35, 0\ns_cselect_b32 s{44+i}, {QSCALE}, 1.0\ns_cmp_eq_u32 s35, 2\ns_cselect_b64 vcc, -1, 0\n'
                    f'v_cndmask_b32 v{31+i}, v8, v37, vcc', 14)
        epi.add(f's_mul_i32 s43, s39, 86\ns_mul_i32 s34, s22, 6\ns_add_u32 s43, s43, s34\ns_lshl_b32 s43, s43, 10\ns_add_u32 s43, s43, {WS_H}', 5)
    def q_roles():
        epi.add('s_lshl_b32 s52, s32, 2\ns_and_b32 s34, s33, 3\ns_add_u32 s52, s52, s34\ns_lshr_b32 s53, s33, 2', 4)
        epi.add('s_lshl_b32 s80, s32, 2\ns_lshr_b32 s34, s33, 3\ns_add_u32 s80, s80, s34\ns_and_b32 s81, s33, 7', 4)
        epi.add('s_and_b32 s82, s20, 1\ns_lshr_b32 s83, s20, 1\ns_lshl_b32 s84, s80, 1\ns_add_u32 s84, s84, s82', 4)
        epi.add(f's_mul_i32 s85, s84, 86\ns_mul_i32 s34, s83, 43\ns_add_u32 s85, s85, s34\ns_lshl_b32 s85, s85, 10\ns_add_u32 s85, s85, {WS_H}', 5)
        epi.add(f's_lshl_b32 s86, s84, 5\ns_lshl_b32 s34, s83, 4\ns_add_u32 s86, s86, s34\ns_lshl_b32 s86, s86, 10\ns_add_u32 s86, s86, {WS_O}', 5)
        epi.add(f's_mul_i32 s87, s83, {43*16*1024}\ns_lshl_b32 s34, s81, 7\ns_add_u32 s87, s87, s34\ns_lshl_b32 s96, s83, 18\ns_add_u32 s96, s96, s34', 5)
        epi.add('s_lshl_b32 s34, s82, 15\ns_add_u32 s87, s87, s34\ns_add_u32 s96, s96, s34', 3)
        epi.add('s_lshl_b32 s97, s83, 13\ns_lshl_b32 s34, s82, 12\ns_add_u32 s97, s97, s34', 3)


    MD, ME = 224, 240
    QA, QB = 56, 60
    KF = 12
    SB = [64, 80, 96, 112]
    OA = [128, 144]
    CP = [160, 176]
    T0 = 192
    VT = [[208, 212], [216, 220]]
    PB = [96, 104]
    MA, MB = 52, 53
    VONES, VFLAG = 54, 55
    VBIG, VZ = 9, 11
    def q_attn_prep():
        epi.add('v_and_b32 v2, 31, v1\nv_lshrrev_b32 v3, 5, v1\nv_lshlrev_b32 v3, 2, v3\nv_sub_u32 v4, v2, v3', 4)
        epi.add(f'v_mov_b32 v{VBIG}, {BIG:#x}\nv_mov_b32 v5, 0', 2)
        for r in range(0, 16, 2):
            c0 = 8 * (r >> 2) + (r & 3); c1 = c0 + 1
            epi.add(f'v_cmp_le_i32 s[56:57], {c0}, v4\nv_cmp_le_i32 s[58:59], {c1}, v4\ns_nop 0\n'
                    f'v_cndmask_b32 v{MD+r}, v{VBIG}, v5, s[56:57]\nv_cndmask_b32 v{MD+r+1}, v{VBIG}, v5, s[58:59]', 5)
        for r in range(16): epi.add(f'v_sub_f32 v{ME+r}, v{VBIG}, v{MD+r}')
        lab = a.newlabel('Le')
        def rz():
            a.e(f's_cmp_eq_u32 s53, 0\ns_cbranch_scc1 {lab}_stub')
            a.label(lab)
            def stub():
                a.label(lab + '_stub')
                for r in range(16): a.e(f'v_mov_b32 v{ME+r}, v{VBIG}')
                a.e(f's_branch {lab}')
            a.stub_fns.append(stub)
        epi.add(rz, 2)
        epi.add(f's_cmp_eq_u32 s53, 0\ns_cselect_b32 s34, {BIG:#x}, 0\nv_mov_b32 v{VZ}, s34', 3)
        epi.add(f's_lshl_b32 s34, s20, 11\ns_add_u32 s35, s34, {KOFF}\nv_add_u32 v6, s35, v8', 3)
        epi.add('v_bfe_u32 v2, v1, 2, 2\nv_lshrrev_b32 v3, 5, v1\nv_lshl_add_u32 v2, v3, 2, v2\nv_lshlrev_b32 v2, 5, v2', 4)
        epi.add('v_and_b32 v3, 1, v1\nv_lshl_add_u32 v2, v3, 4, v2\nv_bfe_u32 v3, v1, 1, 1\nv_lshl_add_u32 v2, v3, 3, v2\n'
                f's_lshl_b32 s34, s20, 11\ns_add_u32 s35, s34, {VOFF}\nv_add_u32 v7, s35, v2', 7)
        epi.add('s_lshl_b32 s88, s20, 1\ns_sub_u32 s88, 8, s88\ns_cmp_eq_u32 s53, 0\ns_cselect_b32 s88, s88, 0', 4)
        epi.add('v_bfe_u32 v3, v1, 4, 1\nv_cmp_eq_u32 s[90:91], 1, v3', 2)
        KS = [40, 41, 42, 44]
        for t in range(4):
            epi.add(f's_lshl_b32 s34, s53, 3\ns_lshl_b32 s35, s20, 2\ns_add_u32 s34, s34, s35\ns_add_i32 s34, s34, {t-8}\ns_max_i32 s34, s34, 0\n'
                    f's_lshl_b32 s34, s34, 10\ns_lshl_b32 s35, s52, 16\ns_add_u32 s34, s34, s35\ns_add_u32 s{KS[t]}, s34, {WS_K}', 9)
        epi.add('s_lshl_b32 s34, s53, 3\ns_lshl_b32 s35, s20, 1\ns_add_u32 s99, s34, s35\ns_lshl_b32 s34, s99, 10\ns_lshl_b32 s35, s52, 16\ns_add_u32 s45, s34, s35', 6)
        epi.add('s_lshl_b32 s46, s20, 12\ns_mov_b32 s100, s52\ns_mov_b32 s101, s53', 3)
    def slot_of(s): return s % 9
    VB = 10
    def b_stage_ops(s):
        ops = []
        for uu in range(2):
            tl = 4 * s + uu
            kinds = ['w2' if tl + 2 * rg < 43 else 'wo' for rg in range(2)]
            for hf in range(2):
                def f(uu=uu, hf=hf, tl=tl, kinds=kinds):
                    m0v = BSLOT[slot_of(s)] + uu * 2048 + hf * 1024
                    offw2 = (tl * 16 + hf * 8) * 1024
                    offwo = (((tl - 43) * 16 + hf * 8) * 1024) & 0xffffffff
                    a.e(f's_add_u32 m0, s97, {m0v}'); m0state[0] = None
                    if kinds[0] == kinds[1]:
                        if kinds[0] == 'w2':
                            a.e(f's_add_u32 s98, s87, {offw2}')
                            a.vmem(f'buffer_load_dwordx4 v{VB}, s[8:11], s98 offen lds', ('b', s))
                        else:
                            a.e(f's_add_u32 s98, s96, {offwo}')
                            a.vmem(f'buffer_load_dwordx4 v{VB}, s[92:95], s98 offen lds', ('b', s)) if False else a.vmem(f'buffer_load_dwordx4 v{VB}, s[12:15], s98 offen lds', ('b', s))
                    else:
                        l1 = a.newlabel('Lb'); l2 = a.newlabel('Lb')
                        a.e(f's_cmp_eq_u32 s82, 0\ns_cbranch_scc0 {l1}')
                        a.e(f's_add_u32 s98, s87, {offw2}\nbuffer_load_dwordx4 v{VB}, s[8:11], s98 offen lds\ns_branch {l2}')
                        a.label(l1)
                        a.e(f's_add_u32 s98, s96, {offwo}\nbuffer_load_dwordx4 v{VB}, s[12:15], s98 offen lds')
                        a.label(l2)
                        a.vm.append(('b', s)); a.vm_ever.add(('b', s))
                ops.append((('b', s), f))
        return ops

    q_store_params(); q_roles(); q_stats()
    while len(epi):
        epi.run(a, 5); vs.poll()
    vs.force([('x', 0), ('w', 0)])
    a.vm_wait([('x', 0), ('w', 0)])
    a.e('s_barrier')
    stamp('bar0')
    read_xa(0); read_w(0, 0); read_w(0, 1); read_w(0, 2)
    q_stats2()
    ld1 = f'buffer_load_dword v39, v12, s[16:19], s50 offen {STF}'
    for n in range(64):
        c, j = divmod(n, 4)
        part = c // 8
        if j == 0:
            if c + 3 < 8:
                for tg, f in dma_x_ops(c + 3): vs.add(tg, f, XC, dl=4*(c+3))
            if c + 4 < 16:
                for tg, f in dma_w_ops(c + 4): vs.add(tg, f, WC if c + 4 < 12 else P['wc2'], dl=4*(c+4))
        stamp(f'n{n}') if ((P or {}).get('stamps') and f'n{n}' in P['stamps']) else None
        if n == 19: epi.drain(a)
        if n == 24:
            a.e(f'v_and_b32 v2, 31, v1\nv_lshlrev_b32 v38, 3, v2\ns_lshl_b32 s50, s39, 8\ns_add_u32 s50, s50, {WS_S}')
            a.vmem(f'buffer_load_dwordx2 v[106:107], v38, s[16:19], s50 offen {STF}', 'srec')
        if n == 30:
            a.vm_wait('srec')
            poll_check(a, 107, None, f'buffer_load_dwordx2 v[106:107], v38, s[16:19], s50 offen {STF}')
            a.e(f'v_lshlrev_b32 v{NMEAN}, 16, v106\nv_and_b32 v{RSTD}, 0xffff0000, v106')
            a.e(f'v_rcp_f32 v{RSTD}, v{RSTD}\nv_xor_b32 v{NMEAN}, 0x80000000, v{NMEAN}')
        if n == 36:
            srd(a, 8, P_W2, 1376 * 512 * 2)
            a.e('v_lshrrev_b32 v2, 3, v1\nv_lshlrev_b32 v2, 10, v2')
            a.e('v_bfe_u32 v3, v1, 4, 1\nv_lshlrev_b32 v3, 2, v3\nv_and_b32 v4, 7, v1\nv_xor_b32 v3, v3, v4')
            a.e(f'v_lshl_add_u32 v{VB}, v3, 4, v2')
            if 'nob1' not in tog:
                for s in range(3):
                    for tg, f in b_stage_ops(s): vs.add(tg, f, P['bc1'], dl=1000 + 4*s - 2)
        if n == 31:
            a.e(f's_lshl_b32 s34, s53, 1\ns_sub_u32 s34, s34, 2')
            a.e('v_lshrrev_b32 v2, 4, v1\nv_add_u32 v2, s34, v2\nv_cmp_le_i32 s[54:55], 0, v2\nv_max_i32 v2, 0, v2')
            a.e('v_and_b32 v3, 15, v1\nv_lshlrev_b32 v2, 6, v2\nv_lshl_add_u32 v12, v3, 2, v2')
            a.e('s_mul_i32 s34, s52, 43691\ns_lshr_b32 s34, s34, 18')
            a.e('s_add_u32 s35, s52, 32\ns_mul_i32 s35, s35, 43691\ns_lshr_b32 s35, s35, 18')
            a.e('s_add_u32 s36, s52, 64\ns_mul_i32 s36, s36, 43691\ns_lshr_b32 s36, s36, 18')
            a.e('v_cmp_eq_u32 s[56:57], s34, v3\nv_cmp_eq_u32 s[58:59], s35, v3\nv_cmp_eq_u32 vcc, s36, v3')
            a.e('s_nop 2\ns_or_b64 s[56:57], s[56:57], s[58:59]\ns_or_b64 s[56:57], s[56:57], vcc\ns_and_b64 s[54:55], s[54:55], s[56:57]')
            a.e(f's_mov_b32 s50, {WS_F}')
        if n == P.get('n_ld1', 60): a.vmem(ld1, 'p1')
        if j == 3 and (c < 15 or True):
            need = []
            if c < 15: need = [('w', c + 1)] + ([('x', c + 1)] if c + 1 < 8 else [])
            if c == P['st0c']: need.append('st0')
            vs.force([t for t in need if t != 'st0'])
            if need: a.vm_wait(need)
            if c == 7: a.lg_wait(('csw', 0))
            if c == 15: a.lg_wait(('csw', 1))
            a.e('s_barrier')
            if c in (3, 7, 11): stamp(f'c{c}')
            if c == P['st0c']: stamp('st0ack') if ((P or {}).get('stamps') and 'st0ack' in P['stamps']) else None
            if c == P['st0c']:
                a.e(f's_lshl_b32 s34, s21, 6\ns_lshl_b32 s35, s22, 2\ns_add_u32 s34, s34, s35\ns_add_u32 s34, s34, {WS_F}')
                a.e(f'v_cmp_eq_u32 vcc, 0, v0\nv_mov_b32 v2, {OOB:#x}\nv_mov_b32 v3, 0\nv_mov_b32 v39, s{S_NONCE}')
                a.e('v_cndmask_b32 v38, v2, v3, vcc')
                a.vmem(f'buffer_store_dword v39, v38, s[16:19], s34 offen {STF}', 'f1')
            if c == 15: q_cs_stage2(1)
        for i in range(3):
            acc = ACC[part] + 16 * i
            w = WF[n & 1] + 4 * i
            cin = '0' if (n % 32) == 0 else f'v[{acc}:{acc+15}]'
            a.lg_wait([('rw', n, i)] + ([('rxa', n)] if (i == 0 and c < 8) else []))
            a.e(f'v_mfma_f32_32x32x16_bf16 v[{acc}:{acc+15}], v[{w}:{w+3}], a[{4*(n%32)}:{4*(n%32)+3}], {cin}')
            budget = P['epi_p1'] if n < 32 else (P['epi_fast'] if n < 46 else P['epi_budget'])
            if n + 1 < 64:
                if i == 0 and (n + 1) // 4 < 8: read_xa(n + 1); budget -= 1
                read_w(n + 1, i); budget -= 1
            if j == 0:
                cs = CSA[i]
                cc = '0' if c % 8 == 0 else f'v[{cs}:{cs+3}]'
                a.e(f'v_mfma_f32_16x16x32_bf16 v[{cs}:{cs+3}], v[40:43], v[{w}:{w+3}], {cc}')
                budget += 2
            t0 = a.t
            vs.poll()
            budget -= (a.t - t0) // 4
            if budget > 0: epi.run(a, budget)
        if j == 1 and c in (7, 15): cs_flush(part)
        if n == 32:
            q_cs_stage2(0); q_epi_all(0)
        if n == 4 * P['st0c'] + 1:
            epi.drain(a); q_attn_prep()
        if 33 <= n and 'st0' in a.vm_ever and len([1 for t_ in a.all_vm if t_ == 'st0']) == 6 and not marks.get('st0iss'):
            marks['st0iss'] = n; stamp('st0iss') if ((P or {}).get('stamps') and 'st0iss' in P['stamps']) else None
        if n == 55: pass
    epi.drain(a)
    stamp('p1end')

    a.vm_wait('p1')
    poll_check(a, 39, 's[54:55]', ld1)
    stamp('f1ok')
    m0state[0] = None
    KS = [40, 41, 42, 44]
    for t in range(4):
        a.e(f's_add_u32 m0, s46, {KOFF + t*1024}\ns_add_u32 s34, s{KS[t]}, {WS_V - WS_K}')
        a.vmem(f'buffer_load_dwordx4 v8, s[16:19], s{KS[t]} offen {STF} lds', 'kv')
        a.e(f's_add_u32 m0, s46, {VOFF + t*1024}\ns_nop 0')
        a.vmem(f'buffer_load_dwordx4 v8, s[16:19], s34 offen {STF} lds', 'kv')
    a.vmem(f'buffer_load_dwordx4 v[{QA}:{QA+3}], v8, s[16:19], s45 offen {STF}', 'q')
    a.vmem(f'buffer_load_dwordx4 v[{QB}:{QB+3}], v8, s[16:19], s45 offen offset:1024 {STF}', 'q')
    a.e(f'v_mov_b32 v2, 0x3f803f80\nv_lshlrev_b32 v3, 2, v0\nv_add_u32 v3, {ONES}, v3')
    a.lds('ds_write_b32 v3, v2', 'ones')
    vs.next_t = a.t + 200
    srd(a, 12, P_WO, 512 * 512 * 2)
    for s_ in range(3 if 'nob1' not in tog else 0, 7):
        for tg, f in b_stage_ops(s_): vs.add(tg, f, P['paceA'], dl=1000 + 4*s_ - 2)
    q_epi_all(1)
    while len(epi):
        epi.run(a, 6); vs.poll()
    stamp('hepi')
    a.e(f'v_and_b32 v3, 15, v1\nv_lshlrev_b32 v3, 3, v3\nv_add_u32 v{VONES}, {ONES}, v3')
    CZ = CP[0]
    for r in range(16): a.e(f'v_mov_b32 v{CZ+r}, v{VZ}')
    a.e(f'v_mov_b32 v{MA}, v{VBIG}\nv_mov_b32 v{MB}, v{VBIG}')
    a.e(f'v_cmp_eq_u32 vcc, 0, v0\nv_mov_b32 v2, {OOB:#x}\nv_mov_b32 v3, 0\nv_mov_b32 v4, s{S_NONCE}')
    a.e(f'v_cndmask_b32 v{VFLAG}, v2, v3, vcc')
    a.e(f's_lshl_b32 s58, s21, 6\ns_lshl_b32 s59, s22, 2\ns_add_u32 s58, s58, s59\ns_add_u32 s58, s58, {WS_F + 1024}')
    a.e(f's_lshr_b32 s34, s80, 1\ns_lshl_b32 s34, s34, 6\ns_add_u32 s89, s34, {WS_F + 1024}')
    a.e('v_and_b32 v2, 15, v1\nv_lshlrev_b32 v5, 2, v2')
    ld2 = f'buffer_load_dword v3, v5, s[16:19], s89 offen {STF}'
    F2LATE = P.get('f2late', False)
    a.vm_wait(['kv', 'q'] + ([] if F2LATE else ['st1']))
    a.lg_drain()
    a.e('s_barrier')
    if not F2LATE: a.vmem(f'buffer_store_dword v4, v{VFLAG}, s[16:19], s58 offen {STF}', 'f2')
    stamp('kvbar')
    Qr = [QA, QB]; M = [MA, MB]
    work = []
    for j in range(10):
        if j <= 8: work.append((j, 0))
        if j >= 1: work.append((j, 1))
    def read_k(j):
        a.lds(f'ds_read_b128 v[{KF+4*j}:{KF+4*j+3}], v6 offset:{j*1024}', ('k', j))
    def thresh(j, writes):
        lab = a.newlabel('Lt')
        a.e(f's_cmp_eq_u32 s88, {j}\ns_cbranch_scc1 {lab}_stub')
        a.label(lab)
        def stub():
            a.label(lab + '_stub')
            a.e('s_nop 7')
            for w in writes: a.e(w)
            a.e(f's_nop 1\ns_branch {lab}')
        a.stub_fns.append(stub)
    read_k(0); read_k(1); read_k(2)
    LOOK = 2
    seenj = set()
    def p1_mfma(idx):
        j, wch = work[idx]; sb = SB[idx % 4]; jj = j - wch
        cm = MD if jj == 8 else (ME if jj == 0 else CZ)
        if j not in seenj:
            seenj.add(j)
            if j in (2, 4, 6, 8): thresh(j, [f'v_mov_b32 v{CZ+r}, 0' for r in range(16)])
            a.lg_wait(('k', j))
        a.e(f'v_mfma_f32_32x32x16_bf16 v[{sb}:{sb+15}], v[{KF+4*j}:{KF+4*j+3}], v[{Qr[wch]}:{Qr[wch]+3}], v[{cm}:{cm+15}]')
        if wch == 0 and j + 3 < 10: read_k(j + 3)
    def p1_max(idx):
        j, wch = work[idx]; sb = SB[idx % 4]; m = M[wch]
        for q in range(8): a.e(f'v_max3_f32 v{m}, v{sb+2*q}, v{sb+2*q+1}, v{m}')
    for idx in range(len(work) + LOOK):
        if idx < len(work): p1_mfma(idx)
        if idx >= LOOK:
            if idx >= len(work) or idx == LOOK: a.e('s_nop 7\ns_nop 3')
            p1_max(idx - LOOK)
        if idx == P.get('ld2idx', 10): a.vmem(ld2, 'p2')
        vs.poll()
    stamp('pass1')
    for m in M:
        a.e(f'v_mov_b32 v2, v{m}\ns_nop 1\nv_permlane32_swap_b32 v{m}, v2\nv_max_f32 v{m}, v{m}, v2\nv_sub_f32 v{m}, 0, v{m}')
    for wch in range(2):
        a.e(f's_cmp_eq_u32 s101, 0\ns_cselect_b64 vcc, -1, 0\nv_cndmask_b32 v2, v{M[wch]}, v{VBIG}, vcc')
        for r in range(16): a.e(f'v_mov_b32 v{CP[wch]+r}, v2')
        vs.poll()
    for r in range(16): a.e(f'v_add_f32 v{T0+r}, v{ME+r}, v{MA}')
    vs.poll()
    for r in range(16): a.e(f'v_add_f32 v{ME+r}, v{ME+r}, v{MB}')
    def h_ops():
        ops = []
        for t in range(43):
            def f(t=t):
                if t % 4 == 0 and t: a.e('s_add_u32 s85, s85, 4096')
                a.vmem(f'buffer_load_dwordx4 a[{4*t}:{4*t+3}], v8, s[16:19], s85 offen offset:{(t%4)*1024} {STF}', ('a', t))
            ops.append((('a', t), f))
        return ops
    def f2check():
        a.vm_wait('p2')
        a.e('s_mov_b32 exec_hi, 0\ns_mov_b32 exec_lo, 0xffff')
        poll_check(a, 3, None, ld2)
        a.e('s_mov_b64 exec, -1')
        for k_, (tg, f) in enumerate(h_ops()): vs.add(tg, f, P['paceA'], dl=1000 + k_)
    HPOLL = P.get('hpoll', 0)
    stamp('tuples')
    first = [True, True]
    seenv = set(); seens = set()
    def v_reads(j):
        a.e(f'v_add_u32 v2, {j*1024}, v7\nv_cndmask_b32 v2, v2, v{VONES}, s[90:91]')
        vt = VT[j & 1]
        for mf in range(2):
            for rd in range(2):
                a.lds(f'ds_read_b64_tr_b16 v[{vt[mf]+2*rd}:{vt[mf]+2*rd+1}], v2 offset:{mf*512 + rd*256}', ('v', j))
    def s_mfma(idx):
        j, wch = work[idx]; sb = SB[idx % 2]; jj = j - wch
        if j not in seens:
            seens.add(j)
            if j in (2, 4, 6, 8):
                thresh(j, [f'v_mov_b32 v{CP[w2]+r}, v{M[w2]}' for w2 in range(2) for r in range(16)])
        if jj == 0: ct = T0 if wch == 0 else ME
        elif jj == 8: ct = T0 if wch == 0 else MD
        else: ct = CP[wch]
        a.e(f'v_mfma_f32_32x32x16_bf16 v[{sb}:{sb+15}], v[{KF+4*j}:{KF+4*j+3}], v[{Qr[wch]}:{Qr[wch]+3}], v[{ct}:{ct+15}]')
    def pv(idx, mf):
        j, wch = work[idx]; pb = PB[idx % 2]; vt = VT[j & 1]; o = OA[wch]
        if mf == 0: a.lg_wait(('v', j))
        cin = '0' if (first[wch] and mf == 0) else f'v[{o}:{o+15}]'
        if mf == 0: first[wch] = False
        a.e(f'v_mfma_f32_32x32x16_bf16 v[{o}:{o+15}], v[{vt[mf]}:{vt[mf]+3}], v[{pb+4*mf}:{pb+4*mf+3}], {cin}')
    nW = len(work)
    v_reads(0); seenv.add(0)
    s_mfma(0)
    a.e('s_nop 7\ns_nop 3')
    for idx in range(nW):
        j, wch = work[idx]; sb = SB[idx % 2]; pb = PB[idx % 2]
        if idx == HPOLL: f2check()
        if idx + 1 < nW: s_mfma(idx + 1)
        for q in range(4):
            a.e(f'v_exp_f32 v{sb+q}, v{sb+q}')
            if q == 1: vs.poll()
        if idx >= 1: pv(idx - 1, 0)
        for q in range(4, 8):
            a.e(f'v_exp_f32 v{sb+q}, v{sb+q}')
            if q == 5: vs.poll()
        if idx >= 1: pv(idx - 1, 1)
        jn = work[min(idx + 1, nW - 1)][0]
        if jn not in seenv: v_reads(jn); seenv.add(jn)
        for q in range(8, 16):
            a.e(f'v_exp_f32 v{sb+q}, v{sb+q}')
            if q in (9, 12, 15): vs.poll()
        if idx == 6:
            for r in range(16): a.e(f'v_add_f32 v{T0+r}, v{MD+r}, v{MA}')
        if idx == 8:
            for r in range(16): a.e(f'v_add_f32 v{MD+r}, v{MD+r}, v{MB}')
        for q in range(8):
            a.e(f'v_cvt_pk_bf16_f32 v{pb+q}, v{sb+2*q}, v{sb+2*q+1}')
            if q == 4: vs.poll()
    a.e('s_nop 1')
    pv(nW - 1, 0); pv(nW - 1, 1)
    stamp('pass2')
    a.e(f's_lshl_b32 s58, s99, 5\ns_add_u32 s58, s58, s100\ns_lshl_b32 s58, s58, 10\ns_add_u32 s58, s58, {WS_O}')
    a.e('v_lshrrev_b32 v2, 5, v1\nv_bfe_u32 v3, v1, 2, 2\nv_lshl_add_u32 v2, v2, 2, v3\nv_lshlrev_b32 v2, 7, v2')
    a.e('v_bfe_u32 v4, v1, 4, 1\nv_lshlrev_b32 v4, 5, v4\nv_and_b32 v5, 3, v1\nv_lshl_add_u32 v4, v5, 3, v4\nv_add_u32 v2, v2, v4')
    a.e('s_lshl_b32 s34, s83, 13\nv_add_u32 v2, s34, v2')
    a.e('v_bfe_u32 v3, v1, 3, 1\nv_lshlrev_b32 v3, 6, v3')
    a.e('v_add_u32 v12, v2, v3\nv_xor_b32 v3, 64, v3\nv_add_u32 v13, v2, v3')
    a.e('v_add_u32 v14, 65536, v12\nv_add_u32 v15, 65536, v13\nv_add_u32 v16, 0x20000, v12\nv_add_u32 v17, 0x20000, v13')
    for wch in range(2):
        o = OA[wch]
        a.e(f'v_rcp_f32 v2, v{o+8}\ns_nop 0')
        for q in range(8): a.e(f'v_mul_f32 v{o+q}, v{o+q}, v2')
        b = SB[wch]
        for q in range(4): a.e(f'v_cvt_pk_bf16_f32 v{b+q}, v{o+2*q}, v{o+2*q+1}')
        a.vmem(f'buffer_store_dwordx4 v[{b}:{b+3}], v8, s[16:19], s58 offen {STF}', 'ost')
        if wch == 0: a.e(f's_add_u32 s58, s58, {32*1024}')

    srd(a, 92, P_OUT, 2 << 20)
    a.e('v_and_b32 v2, 31, v1\nv_lshlrev_b32 v2, 10, v2\nv_lshrrev_b32 v3, 5, v1\nv_lshl_add_u32 v18, v3, 3, v2')
    a.e('s_lshl_b32 s37, s84, 15\ns_lshl_b32 s34, s81, 7\ns_add_u32 s37, s37, s34\ns_lshl_b32 s34, s83, 6\ns_add_u32 s37, s37, s34')
    XR = 20
    ACC3 = [160, 176]; WF3 = [64, 72, 80]
    def read_b(t, i):
        s, u = divmod(t, 4)
        base = BSLOT[slot_of(s)] + u * 2048
        for rd in range(2):
            addr = base + rd * 1024
            win = addr >> 16; off = addr & 0xffff
            r = WF3[t % 3] + 4 * i + 2 * rd
            a.lds(f'ds_read_b64_tr_b16 v[{r}:{r+1}], v{12+2*win+i} offset:{off}', ('rb', t, i))
    vs.force([('b', 0), ('b', 1), ('a', 0), ('a', 1), ('a', 2), ('a', 3)])
    a.vm_wait(('b', 0))
    a.e('s_barrier')
    stamp('p3start')
    read_b(0, 0); read_b(0, 1); read_b(1, 0); read_b(1, 1)
    for s in (7, 8):
        for tg, f in b_stage_ops(s): vs.add(tg, f, P['pace3'], dl=1000 + 4*s - 2)
    a.e(f's_lshr_b32 s58, s80, 2\ns_lshl_b32 s58, s58, 7\ns_add_u32 s89, s58, {WS_F + 2048}')
    a.e('v_and_b32 v2, 31, v1\nv_lshlrev_b32 v5, 2, v2')
    ld3 = f'buffer_load_dword v3, v5, s[16:19], s89 offen {STF}'
    xr_done = [False]
    for t in range(NSTEP3):
        s, u = divmod(t, 4)
        stamp(f't{t}') if ((P or {}).get('stamps') and f't{t}' in P['stamps']) else None
        t2 = t + 2
        if t2 < NSTEP3 and t2 % 4 == 0:
            s2_ = t2 // 4
            vs.force(('b', s2_))
            a.vm_wait([('b', s2_)] + (['ost'] if s2_ == P.get('f3stage', 2) else []))
            a.e('s_barrier')
            if s2_ == P.get('f3stage', 2):
                a.e(f's_lshl_b32 s58, s101, 7\ns_lshl_b32 s59, s100, 2\ns_add_u32 s58, s58, s59\ns_add_u32 s58, s58, {WS_F + 2048}')
                a.e(f'v_mov_b32 v4, s{S_NONCE}')
                a.vmem(f'buffer_store_dword v4, v{VFLAG}, s[16:19], s58 offen {STF}', 'f3')
            nxt = s2_ - 2 + 9
            if s2_ >= 2 and nxt < NSTG:
                for tg, f in b_stage_ops(nxt): vs.add(tg, f, P['pace3'], dl=1000 + 4*nxt - 2)
        if t == P.get('t3ld', 18): a.vmem(ld3, 'p3')
        if t == P.get('t3chk', 24):
            a.vm_wait('p3')
            poll_check(a, 3, None, ld3)
            for tt in range(16):
                def f(tt=tt):
                    if tt % 4 == 0 and tt: a.e('s_add_u32 s86, s86, 4096')
                    a.vmem(f'buffer_load_dwordx4 a[{172+4*tt}:{172+4*tt+3}], v8, s[16:19], s86 offen offset:{(tt%4)*1024} {STF}', ('a', 43 + tt))
                vs.add(('a', 43 + tt), f, P['pace3'], dl=1000 + 43 + tt - 4)
        if t == 40:
            for g in range(4):
                a.vmem(f'buffer_load_dwordx2 v[{XR+2*g}:{XR+2*g+1}], v18, s[4:7], s37 offen offset:{16*g}', 'xr')
        for ta in range(t, min(t + 7, NSTEP3)):
            if vs.has(('a', ta)): vs.force(('a', ta))
        a.vm_wait(('a', t))
        for i in range(2):
            w = WF3[t % 3] + 4 * i
            a.lg_wait(('rb', t, i))
            cin = '0' if t == 0 else f'v[{ACC3[i]}:{ACC3[i]+15}]'
            a.e(f'v_mfma_f32_32x32x16_bf16 v[{ACC3[i]}:{ACC3[i]+15}], v[{w}:{w+3}], a[{4*t}:{4*t+3}], {cin}')
            if t + 2 < NSTEP3: read_b(t + 2, i)
            vs.poll()
    assert len(vs) == 0, len(vs)
    a.lg_drain()
    a.e('s_barrier')
    stamp('p3end')
    a.e('s_nop 7\ns_nop 7')
    a.e('s_lshl_b32 s35, s20, 12\nv_add_u32 v2, s35, v8')
    a.e('s_xor_b32 s36, s20, 2\ns_lshl_b32 s36, s36, 12\nv_add_u32 v3, s36, v8')
    l0 = a.newlabel('Lr'); l1 = a.newlabel('Lr')
    a.e(f's_cmp_eq_u32 s83, 0\ns_cbranch_scc0 {l0}')
    for q in range(4): a.e(f'ds_write_b128 v2, v[{ACC3[1]+4*q}:{ACC3[1]+4*q+3}] offset:{q*1024}')
    a.e(f's_branch {l1}')
    a.label(l0)
    for q in range(4): a.e(f'ds_write_b128 v2, v[{ACC3[0]+4*q}:{ACC3[0]+4*q+3}] offset:{q*1024}')
    for r in range(16): a.e(f'v_mov_b32 v{ACC3[0]+r}, v{ACC3[1]+r}')
    a.label(l1)
    a.e('s_waitcnt lgkmcnt(0)\ns_barrier')
    R = 64
    for q in range(4): a.e(f'ds_read_b128 v[{R+4*q}:{R+4*q+3}], v3 offset:{q*1024}')
    a.vm_wait('xr')
    a.e('s_waitcnt lgkmcnt(0)')
    for r in range(16): a.e(f'v_add_f32 v{ACC3[0]+r}, v{ACC3[0]+r}, v{R+r}')
    for g in range(4):
        for q in range(2):
            x = XR + 2 * g + q; r = ACC3[0] + 4 * g + 2 * q
            a.e(f'v_lshlrev_b32 v2, 16, v{x}\nv_and_b32 v3, 0xffff0000, v{x}')
            a.e(f'v_add_f32 v{r}, v{r}, v2\nv_add_f32 v{r+1}, v{r+1}, v3')
    for g in range(4):
        for q in range(2):
            r = ACC3[0] + 4 * g + 2 * q
            a.e(f'v_cvt_pk_bf16_f32 v{R+2*g+q}, v{r}, v{r+1}')
    for g in range(4):
        a.vmem(f'buffer_store_dwordx2 v[{R+2*g}:{R+2*g+1}], v18, s[92:95], s37 offen offset:{16*g}', 'ost2')
    if a.stamps_on: a.e('s_waitcnt vmcnt(0)')
    stamp('end')
    a.dump_stamps()
    a.label(end)
    a.e('s_endpgm')
    for fn in a.stub_fns: fn()
    a.label('Lcode_end')
    a.est_total = a.t
```

```python
from collections import deque
from asmlib import *
from k1 import f2u, QSCALE, header, kd

WS_Q = 0; WS_K = 2 << 20; WS_V = 4 << 20; WS_H = 6 << 20; WS_O = 12 << 20
WS_F = 15 << 20; WS_F2 = WS_F + 4096; WS_F3 = WS_F + 8192; WS_S = WS_F + 16384; WS_SIZE = 16 << 20
OOB = 0x7ffffff0
BIG = 0xF149F2CA
NST = 6; WST = 12288
XRING = NST * WST
XSL = 16384
CS_OFF = 157440
CSP = CS_OFF + 3072
STATL = CS_OFF + 6144
KOFF = XRING; VOFF = XRING + 16384; ONES = XRING + 32768
BSLOT = [140288, 107520, 123904, 0, 16384, 32768, 49152, 73728, 90112]
LDS_BYTES = 163840
NSTEP3 = 59; NSTG = 15
S_WAVE = 20; S_RB = 21; S_CB = 22; S_NONCE = 23
P_X, P_WQKV, P_WO, P_BX, P_W1, P_W2, P_OUT, P_DBG, P_WS = 60, 62, 64, 66, 68, 70, 72, 74, 76

def srd(a, s, ptr, size):
    a.e(f's_mov_b32 s{s}, s{ptr}\ns_and_b32 s{s+1}, s{ptr+1}, 0xffff\ns_mov_b32 s{s+2}, {size}\ns_mov_b32 s{s+3}, 0x20000')

class Q:
    def __init__(self): self.q = deque()
    def add(self, item, cost=1): self.q.append((cost, item))
    debt = 0
    def run(self, a, budget):
        if self.debt > 0:
            d = min(self.debt, budget); self.debt -= d; budget -= d
        while self.q and budget > 0:
            cost, it = self.q.popleft()
            if callable(it): it()
            else: a.e(it)
            budget -= cost
        if budget < 0 and budget > -10**8: self.debt = -budget
        return budget
    def drain(self, a):
        self.debt = 0
        self.run(a, 10 ** 9); self.debt = 0
    def __len__(self): return len(self.q)

def poll_check(a, vdata, need, load_txt, wave0=False):
    lab = a.newlabel('Lp')
    if wave0: a.e(f's_cmp_lg_u32 s{S_WAVE}, 0\ns_cbranch_scc1 {lab}')
    a.e(f'v_cmp_ne_u32 vcc, s{S_NONCE}, v{vdata}')
    a.e('s_nop 2')
    a.e(f's_and_b64 s[56:57], vcc, {need or "exec"}')
    a.e(f's_cbranch_scc1 {lab}_stub')
    a.label(lab)
    def stub():
        a.label(lab + '_stub')
        a.e('s_mov_b32 s58, 0')
        a.label(lab + '_loop')
        a.e('s_sleep 3')
        a.e(load_txt)
        a.e('s_waitcnt vmcnt(0)')
        a.e(f'v_cmp_ne_u32 vcc, s{S_NONCE}, v{vdata}')
        a.e('s_add_u32 s58, s58, 1\ns_cmp_gt_u32 s58, 0x40000')
        a.e(f's_cbranch_scc1 {lab}')
        a.e(f's_and_b64 s[56:57], vcc, {need or "exec"}')
        a.e(f's_cbranch_scc1 {lab}_loop')
        a.e(f's_branch {lab}')
    a.stub_fns.append(stub)

def fused(a, name, tog=(), P=None):
    _st = a.stamp
    def stamp(nm):
        sel = (P or {}).get('stamps')
        if sel is None or nm in sel:
            if a.stamps_on: a.stamp_names.append(nm)
            _st()
    a.stamp_names = []
    P = dict(rot='rb', xc=24, wc=24, wc2=60, pace3=60, paceA=100, epi_budget=4, epi_p1=6, bc1=90, f1c=11, n_ld1=62, n_b1=40) | (P or {})
    STF = 'sc1'
    a.stub_fns = []; marks = {}; a.marks = marks
    header(a, name)
    end = f'{name}_end'
    vs = VStream(a)
    m0state = [None]
    def set_m0(key, code):
        if m0state[0] != key:
            a.e(code); m0state[0] = key
            return True
        return False
    a.e(f's_cmp_ge_u32 s2, 256\ns_cbranch_scc1 {end}')
    stamp('start')
    a.e('s_load_dwordx16 s[60:75], s[0:1], 0')
    a.e('s_load_dwordx2 s[76:77], s[0:1], 64')
    a.e('s_memtime s[78:79]')
    a.e('v_and_b32 v1, 63, v0\nv_lshrrev_b32 v2, 6, v0')
    a.e('s_and_b32 s32, s2, 7\ns_lshr_b32 s33, s2, 3')
    a.e(f'v_readfirstlane_b32 s{S_WAVE}, v2')
    a.e('v_lshlrev_b32 v8, 4, v1')
    a.e('s_and_b32 s21, s32, 1\ns_lshl_b32 s21, s21, 3\ns_and_b32 s34, s33, 7\ns_add_u32 s21, s21, s34')
    a.e('s_lshr_b32 s22, s32, 1\ns_lshl_b32 s22, s22, 2\ns_lshr_b32 s34, s33, 3\ns_add_u32 s22, s22, s34')
    a.e('v_lshrrev_b32 v2, 3, v1\nv_lshlrev_b32 v2, 10, v2')
    a.e('v_and_b32 v3, 7, v1\nv_lshrrev_b32 v4, 4, v1\nv_xor_b32 v3, v3, v4')
    a.e('v_lshl_add_u32 v9, v3, 4, v2')
    a.e('v_xor_b32 v3, 4, v3\nv_lshl_add_u32 v10, v3, 4, v2')
    a.e('v_add_u32 v11, 14336, v9\nv_add_u32 v12, 21504, v10\nv_add_u32 v10, 7168, v10')
    a.e('s_mov_b32 s35, 43691\ns_movk_i32 s36, 3072')
    for t in range(3):
        a.e(f'v_add_u32 v2, {64*t}, v1' if t else 'v_mov_b32 v2, v1')
        a.e(f'v_mul_u32_u24 v{44+t}, s35, v2\nv_lshrrev_b32 v{44+t}, 19, v{44+t}')
        a.e(f'v_mul_u32_u24 v4, 12, v{44+t}\nv_sub_u32 v4, v2, v4\nv_lshlrev_b32 v{47+t}, 4, v4')
        if t: a.e(f'v_subrev_u32 v{47+t}, {1024*t}, v{47+t}')
        a.e(f'v_mad_u32_u24 v{13+t}, v{44+t}, s36, v{47+t}')
    a.e('s_lshl_b32 s24, s21, 7\ns_lshl_b32 s34, s20, 5\ns_add_u32 s24, s24, s34\ns_lshl_b32 s24, s24, 10')
    a.e('s_mul_i32 s25, s20, 49152\ns_mul_i32 s26, s22, 192\ns_add_u32 s25, s25, s26')
    a.e('s_mul_i32 s27, s20, 3072')
    a.e(f's_lshl_b32 s28, s20, 12\ns_add_u32 s28, s28, {XRING}')
    rotm = P.get('rot', 'rb+cb')
    if rotm == 'rb+cb': a.e('s_add_u32 s29, s21, s22')
    elif rotm == 'rb': a.e('s_mov_b32 s29, s21')
    elif rotm == 'cb': a.e('s_mov_b32 s29, s22')
    elif rotm == 'rb2': a.e('s_lshl_b32 s29, s21, 1')
    elif rotm == 'rb4': a.e('s_lshl_b32 s29, s21, 2')
    else: a.e('s_mov_b32 s29, 0')
    a.e('s_lshl_b32 s30, s21, 7\ns_lshl_b32 s34, s22, 3\ns_add_u32 s30, s30, s34\ns_lshl_b32 s34, s20, 1\ns_add_u32 s31, s30, s34\ns_lshl_b32 s31, s31, 10')
    a.e(f's_or_b32 s34, s2, s20\nv_or_b32 v2, s34, v1\nv_mov_b32 v3, {OOB:#x}\nv_mov_b32 v4, 0\nv_cmp_eq_u32 vcc, 0, v2')
    a.e('s_nop 0\ns_waitcnt lgkmcnt(0)')
    a.e('v_cndmask_b32 v7, v3, v4, vcc')
    srd(a, 4, P_X, 2 << 20)
    srd(a, 8, P_WQKV, 512 * 1536 * 2)

    def dma_x_ops(c):
        ops = []
        for t in range(4):
            def f(t=t):
                if t == 0: a.e(f's_add_u32 s48, s29, {c}\ns_and_b32 s48, s48, 7\ns_lshl_b32 s48, s48, 7\ns_add_u32 s48, s48, s24')
                if set_m0(('x', c), f's_add_u32 m0, s28, {(c % 4) * XSL}') and t: a.e('s_nop 0')
                if t == 0 and a.lines[-1].startswith('s_add_u32 m0'): a.e('s_nop 0')
                a.vmem(f'buffer_load_dwordx4 v{9+t}, s[4:7], s48 offen offset:{1024*t} lds', ('x', c))
            ops.append((('x', c), f))
        return ops
    def dma_w_ops(c):
        ops = []
        for t in range(3):
            def f(t=t):
                if t == 0:
                    a.e(f's_add_u32 s49, s29, {c}\ns_and_b32 s49, s49, 7')
                    if c < 8: a.e(f's_mul_i32 s49, s49, {64*3072}\ns_add_u32 s49, s49, s25')
                    else: a.e(f's_mul_i32 s49, s49, {64*2752}\ns_add_u32 s49, s49, s26')
                if set_m0(('w', c), f's_add_u32 m0, s27, {(c % NST) * WST}'): a.e('s_nop 0')
                if c < 8: a.vmem(f'buffer_load_dwordx4 v{13+t}, s[8:11], s49 offen offset:{1024*t} lds', ('w', c))
                else: a.vmem(f'buffer_load_dwordx4 v{16+t}, s[12:15], s49 offen offset:{1024*t} lds', ('w', c))
            ops.append((('w', c), f))
        return ops
    a.vmem('buffer_load_dwordx4 v[112:115], v8, s[4:7], s31 offen', 'srow')
    a.vmem('buffer_load_dwordx4 v[116:119], v8, s[4:7], s31 offen offset:1024', 'srow')
    for _, f in dma_x_ops(0): f()
    for _, f in dma_w_ops(0): f()
    if P.get('touch', 1):
        a.e('s_lshl_b32 s51, s2, 2\ns_add_u32 s51, s51, s20\ns_mul_i32 s50, s51, 1536')
        a.vmem('buffer_load_dwordx4 v[120:123], v8, s[8:11], s50 offen', 'tch')
        a.vmem('buffer_load_dwordx4 v[120:123], v8, s[8:11], s50 offen offset:512', 'tch')
    srd(a, 88, P_DBG, 256)
    a.e('s_or_b32 s78, s78, 1\nv_mov_b32 v5, s78')
    a.vmem('buffer_store_dword v5, v7, s[88:91], 0 offen sc0 sc1', 'nst')
    a.e('v_mov_b32 v7, 0')
    stamp('pro1')
    XC, WC = P['xc'], P['wc']
    vs.next_t = a.t + P.get('pro_gap', 150)
    for c in (1, 2):
        for tg, f in dma_x_ops(c): vs.add(tg, f, XC, dl=4*c)
        for tg, f in dma_w_ops(c): vs.add(tg, f, WC, dl=4*c)
    for tg, f in dma_w_ops(3): vs.add(tg, f, WC, dl=12)
    def E(txt):
        for l in txt.split('\n'):
            a.e(l)
            if not l.startswith(('v_cmp', 's_cmp', 's_add_u32 m0', 's_cselect')): vs.poll()
    E('v_lshrrev_b32 v2, 5, v1\nv_bfe_u32 v3, v1, 2, 2\nv_lshl_add_u32 v3, v2, 3, v3\nv_mul_u32_u24 v3, 192, v3')
    E('v_bfe_u32 v4, v1, 4, 1\nv_lshlrev_b32 v4, 5, v4\nv_and_b32 v5, 3, v1\nv_lshl_add_u32 v4, v5, 3, v4\nv_add_u32 v3, v3, v4')
    E('v_and_b32 v4, 31, v1\nv_bfe_u32 v5, v1, 1, 3\nv_xor_b32 v5, v5, v2\nv_lshlrev_b32 v5, 4, v5')
    E('v_lshlrev_b32 v38, 7, v4\nv_add_u32 v38, s28, v38')
    for j in range(4):
        a.e(f's_add_u32 s34, s20, {j}\ns_and_b32 s34, s34, 3')
        a.e(f's_mul_i32 s35, s34, 3072\nv_add_u32 v{19+j}, s35, v3')
        a.e(f's_lshl_b32 s35, s34, 5\nv_xor_b32 v39, s35, v5\nv_add_u32 v{23+j}, v38, v39')
        vs.poll()
    a.e('s_movk_i32 s37, 2752')
    for t in range(3): E(f'v_mad_u32_u24 v{16+t}, v{44+t}, s37, v{47+t}')
    a.e('s_mul_i32 s34, s20, 44032\ns_add_u32 s26, s26, s34')
    E('v_and_b32 v3, 3, v1\nv_bfe_u32 v38, v1, 2, 1\nv_bfe_u32 v5, v1, 4, 1\nv_xor_b32 v38, v38, v5\nv_or_b32 v3, v3, v38')
    a.e('v_cmp_eq_u32 vcc, 0, v3\nv_mov_b32 v5, 0x3f803f80\ns_nop 0\nv_cndmask_b32 v40, 0, v5, vcc')
    E('v_mov_b32 v41, v40\nv_mov_b32 v42, v40\nv_mov_b32 v43, v40')
    a.e(f's_mul_i32 s34, s20, 384\ns_add_u32 s35, s34, {CS_OFF}')
    a.e('v_lshl_add_u32 v27, v4, 2, s35')
    a.e(f'v_lshlrev_b32 v28, 2, v1\nv_add_u32 v28, {CS_OFF}, v28')
    a.e(f's_add_u32 s35, s34, {CSP}\nv_lshl_add_u32 v29, v1, 2, s35')
    a.e('v_lshlrev_b32 v2, 4, v2\nv_add_u32 v30, s35, v2')
    E('v_lshl_add_u32 v37, v4, 5, v2')
    srd(a, 12, P_W1, 512 * 1376 * 2)
    srd(a, 16, P_WS, WS_SIZE)
    if P.get('touch', 1):
        def tw1():
            a.e('s_mul_i32 s50, s51, 1376')
            a.vmem('buffer_load_dwordx4 v[120:123], v8, s[12:15], s50 offen', 'tch')
            a.vmem('buffer_load_dwordx4 v[120:123], v8, s[12:15], s50 offen offset:352', 'tch')
        def tw2():
            srd(a, 92, P_W2, 1376 * 512 * 2)
            a.e('s_mul_i32 s50, s51, 1376')
            a.vmem('buffer_load_dwordx4 v[120:123], v8, s[92:95], s50 offen', 'tch')
            a.vmem('buffer_load_dwordx4 v[120:123], v8, s[92:95], s50 offen offset:352', 'tch')
        def two():
            srd(a, 92, P_WO, 512 * 512 * 2)
            a.e('s_lshl_b32 s50, s51, 9')
            a.vmem('buffer_load_dwordx4 v[120:123], v8, s[92:95], s50 offen', 'tch')
        touches = [tw1, tw2, two]
    else: touches = []
    if 'nopf' not in tog:
        a.e('s_getpc_b64 s[98:99]')
        a.label('Lpf_base')
        a.e('s_lshl_b32 s34, s33, 2\ns_add_u32 s34, s34, s20\ns_min_u32 s34, s34, (Lcode_end-Lpf_base)/1024-1\ns_lshl_b32 s34, s34, 10')
        a.e('s_add_u32 s98, s98, s34\ns_addc_u32 s99, s99, 0')
        a.vmem('global_load_dwordx4 v[120:123], v8, s[98:99]', 'pf')
    stamp('pro2')

    WF = [56, 68]; ACC = [128, 176]; CSA = [44, 48, 52]
    NMEAN, RSTD, RS2 = 34, 36, 38
    def read_w(n, i):
        c, j = divmod(n, 4)
        st = (c % NST) * WST
        for rd in range(2):
            r = WF[n & 1] + 4 * i + 2 * rd
            a.lds(f'ds_read_b64_tr_b16 v[{r}:{r+1}], v{19+j} offset:{st + rd*768 + 64*i}', ('rw', n, i))
    def read_xa(n):
        c, j = divmod(n, 4)
        if c < 8: a.lds(f'ds_read_b128 a[{4*n}:{4*n+3}], v{23+j} offset:{(c%4)*XSL}', ('rxa', n))
    epi = Q()
    def cs_flush(part):
        for i in range(3):
            a.lds(f'ds_write_b32 v27, v{CSA[i]} offset:{part*1536 + i*128}', ('csw', part))
    def q_cs_stage2(part):
        def rd():
            for w in range(4): a.lds(f'ds_read_b32 v{80+w}, v28 offset:{part*1536 + w*384}', ('cs2', part))
        def rd2():
            for w in range(4): a.lds(f'ds_read_b32 v{84+w}, v28 offset:{part*1536 + w*384 + 256}', ('cs2', part))
        epi.add(rd, 4); epi.add(rd2, 4)
        epi.add(lambda: a.lg_wait(('cs2', part)), 1)
        for t in ['v_add_f32 v80, v80, v81', 'v_add_f32 v82, v82, v83', 'v_add_f32 v84, v84, v85', 'v_add_f32 v86, v86, v87',
                  'v_add_f32 v80, v80, v82', 'v_add_f32 v84, v84, v86']: epi.add(t)
        epi.add(lambda: a.lds(f'ds_write_b32 v29, v80 offset:{part*1536}', ('cs3', part)))
        def w2():
            a.e('s_mov_b32 exec_hi, 0')
            a.lds(f'ds_write_b32 v29, v84 offset:{part*1536 + 256}', ('cs3', part))
            a.e('s_mov_b32 exec_hi, -1')
        epi.add(w2, 3)
    def epi_burst(part):
        TSET = [80, 112] if part == 0 else [80, 64]
        def rd(i):
            T_ = TSET[i & 1]
            for g in range(4): a.lds(f'ds_read_b128 v[{T_+4*g}:{T_+4*g+3}], v30 offset:{part*1536 + i*128 + g*32}', ('cs', part, i))
        rd(0); rd(1)
        for i in range(3):
            acc = ACC[part] + 16 * i; b = 96 + 8 * (i & 1); T_ = TSET[i & 1]
            if part == 0: a.e(f'v_mul_f32 v{RS2}, s{44+i}, v{RSTD}')
            rs = RS2 if part == 0 else RSTD
            a.lg_wait(('cs', part, i))
            for q in range(8): a.e(f'v_pk_fma_f32 v[{T_+2*q}:{T_+2*q+1}], v[{T_+2*q}:{T_+2*q+1}], v[{NMEAN}:{NMEAN+1}], v[{acc+2*q}:{acc+2*q+1}] op_sel_hi:[1,0,1]')
            for q in range(8): a.e(f'v_pk_mul_f32 v[{T_+2*q}:{T_+2*q+1}], v[{T_+2*q}:{T_+2*q+1}], v[{rs}:{rs+1}] op_sel_hi:[1,0]')
            for q in range(8): a.e(f'v_cvt_pk_bf16_f32 v{b+q}, v{T_+2*q}, v{T_+2*q+1}')
            if i == 0: rd(2)
            if part == 1:
                for q in range(8): a.e(f'v_pk_max_i16 v{b+q}, v{b+q}, 0')
            if part == 0:
                a.vmem(f'buffer_store_dwordx4 v[{b}:{b+3}], v{31+i}, s[16:19], s{40+i} offen {STF}', 'st0')
                a.e(f's_add_u32 s{40+i}, s{40+i}, 65536')
                a.vmem(f'buffer_store_dwordx4 v[{b+4}:{b+7}], v{31+i}, s[16:19], s{40+i} offen {STF}', 'st0')
            else:
                a.e(f's_mul_i32 s34, s22, 3\ns_add_u32 s34, s34, {i}\ns_cmp_ge_u32 s34, 43\ns_cselect_b32 s35, {OOB - 65536:#x}, s43')
                a.vmem(f'buffer_store_dwordx4 v[{b}:{b+3}], v8, s[16:19], s35 offen offset:0 {STF}', 'st1')
                a.vmem(f'buffer_store_dwordx4 v[{b+4}:{b+7}], v8, s[16:19], s35 offen offset:1024 {STF}', 'st1')
                a.e('s_add_u32 s43, s43, 2048')
                if i == 0: vs.poll()

    def q_stats():
        epi.add(lambda: a.vm_wait('srow'))
        T = 224
        for r in range(2):
            x = 112 + 4 * r
            for q in range(4):
                epi.add(f'v_lshlrev_b32 v{T+16*r+2*q}, 16, v{x+q}'); epi.add(f'v_and_b32 v{T+16*r+2*q+1}, 0xffff0000, v{x+q}')
        SA = [104, 106]; QA_ = [105, 107]
        for r in range(2):
            b = T + 16 * r
            epi.add(f'v_add_f32 v{SA[r]}, v{b}, v{b+1}'); epi.add(f'v_mul_f32 v{QA_[r]}, v{b}, v{b}')
        for q in range(1, 8):
            for r in range(2):
                b = T + 16 * r
                if q >= 2: epi.add(f'v_add_f32 v{SA[r]}, v{SA[r]}, v{b+q}')
                epi.add(f'v_fma_f32 v{QA_[r]}, v{b+q}, v{b+q}, v{QA_[r]}')
        for ctl in ['row_shr:1 row_mask:0xf bank_mask:0xf bound_ctrl:0', 'row_shr:2 row_mask:0xf bank_mask:0xf bound_ctrl:0',
                    'row_shr:4 row_mask:0xf bank_mask:0xf bound_ctrl:0', 'row_shr:8 row_mask:0xf bank_mask:0xf bound_ctrl:0',
                    'row_bcast:15 row_mask:0xa bank_mask:0xf', 'row_bcast:31 row_mask:0xc bank_mask:0xf']:
            epi.add('s_nop 1\n' + '\n'.join(f'v_add_f32_dpp v{r}, v{r}, v{r} {ctl}' for r in [104, 105, 106, 107]), 5)
        for r in range(2):
            S, Qq = SA[r], QA_[r]
            for t in [f'v_mul_f32 v{S}, 0x3b000000, v{S}', f'v_mul_f32 v{Qq}, 0x3b000000, v{Qq}', f'v_fma_f32 v{Qq}, -v{S}, v{S}, v{Qq}',
                      f'v_max_f32 v{Qq}, 0, v{Qq}', f'v_cvt_pk_bf16_f32 v{S}, v{S}, v{S}', f'v_cvt_pk_bf16_f32 v{Qq}, v{Qq}, v{Qq}',
                      f'v_and_b32 v{Qq}, 0xffff0000, v{Qq}', f'v_add_f32 v{Qq}, {f2u(1e-5):#x}, v{Qq}', f'v_cvt_pk_bf16_f32 v{Qq}, v{Qq}, v{Qq}',
                      f'v_and_b32 v{Qq}, 0xffff0000, v{Qq}', f'v_sqrt_f32 v{Qq}, v{Qq}\nv_and_b32 v{S}, 0xffff, v{S}',
                      f'v_cvt_pk_bf16_f32 v{Qq}, v{Qq}, v{Qq}', f'v_and_b32 v{Qq}, 0xffff0000, v{Qq}', f'v_or_b32 v{108+2*r}, v{S}, v{Qq}']:
                epi.add(t)
    def q_stats2():
        lab = a.newlabel('Ln')
        def nchk():
            a.vm_wait('npoll')
            a.e(f'v_readfirstlane_b32 s{S_NONCE}, v6')
            a.e(f's_nop 3\ns_cmp_eq_u32 s{S_NONCE}, 0\ns_cbranch_scc1 {lab}_stub')
            a.label(lab)
        def nstub():
            a.label(lab + '_stub')
            a.e('s_mov_b32 s58, 0')
            a.label(lab + '_loop')
            a.e('s_sleep 1\nbuffer_load_dword v6, v7, s[88:91], 0 offen sc0 sc1\ns_waitcnt vmcnt(0)')
            a.e(f'v_readfirstlane_b32 s{S_NONCE}, v6')
            a.e(f's_add_u32 s58, s58, 1\ns_cmp_gt_u32 s58, 0x40000\ns_cbranch_scc1 {lab}')
            a.e(f's_cmp_eq_u32 s{S_NONCE}, 0\ns_cbranch_scc1 {lab}_loop\ns_branch {lab}')
        a.stub_fns.append(nstub)
        a.vmem('buffer_load_dword v6, v7, s[88:91], 0 offen sc0 sc1', 'npoll')
        epi.add('s_nop 0', P.get('ndelay', 40))
        epi.add(nchk, 5)
        def fin():
            a.e(f'v_mov_b32 v109, s{S_NONCE}\nv_mov_b32 v111, s{S_NONCE}\nv_cmp_eq_u32 vcc, 63, v1\nv_mov_b32 v2, {OOB:#x}\nv_mov_b32 v3, 0\n'
                f'v_cndmask_b32 v2, v2, v3, vcc\ns_lshr_b32 s34, s31, 7\ns_add_u32 s34, s34, {WS_S}')
            a.vmem(f'buffer_store_dwordx4 v[108:111], v2, s[16:19], s34 offen {STF}', 'strec')
        epi.add(fin, 9)

    def q_store_params():
        epi.add('s_lshl_b32 s39, s21, 2\ns_add_u32 s39, s39, s20', 2)
        for i in range(3):
            epi.add(f's_mul_i32 s34, s22, 3\ns_add_u32 s34, s34, {i}\ns_lshr_b32 s35, s34, 4\ns_and_b32 s34, s34, 15\ns_lshl_b32 s34, s34, 17\n'
                    f's_lshl_b32 s{40+i}, s35, 21\ns_add_u32 s{40+i}, s{40+i}, s34\ns_lshl_b32 s34, s39, 10\ns_add_u32 s{40+i}, s{40+i}, s34\n'
                    f's_cmp_eq_u32 s35, 0\ns_cselect_b32 s{44+i}, {QSCALE}, 1.0\ns_cmp_eq_u32 s35, 2\ns_cselect_b64 vcc, -1, 0\n'
                    f'v_cndmask_b32 v{31+i}, v8, v37, vcc', 14)
        epi.add(f's_mul_i32 s43, s39, 86\ns_mul_i32 s34, s22, 6\ns_add_u32 s43, s43, s34\ns_lshl_b32 s43, s43, 10\ns_add_u32 s43, s43, {WS_H}', 5)
    def q_roles():
        epi.add('s_lshl_b32 s52, s32, 2\ns_and_b32 s34, s33, 3\ns_add_u32 s52, s52, s34\ns_lshr_b32 s53, s33, 2', 4)
        epi.add('s_lshl_b32 s80, s32, 2\ns_lshr_b32 s34, s33, 3\ns_add_u32 s80, s80, s34\ns_and_b32 s81, s33, 7', 4)
        epi.add('s_and_b32 s82, s20, 1\ns_lshr_b32 s83, s20, 1\ns_lshl_b32 s84, s80, 1\ns_add_u32 s84, s84, s82', 4)
        epi.add(f's_mul_i32 s85, s84, 86\ns_mul_i32 s34, s83, 43\ns_add_u32 s85, s85, s34\ns_lshl_b32 s85, s85, 10\ns_add_u32 s85, s85, {WS_H}', 5)
        epi.add(f's_lshl_b32 s86, s84, 5\ns_lshl_b32 s34, s83, 4\ns_add_u32 s86, s86, s34\ns_lshl_b32 s86, s86, 10\ns_add_u32 s86, s86, {WS_O}', 5)
        epi.add(f's_mul_i32 s87, s83, {43*16*1024}\ns_lshl_b32 s34, s81, 7\ns_add_u32 s87, s87, s34\ns_lshl_b32 s96, s83, 18\ns_add_u32 s96, s96, s34', 5)
        epi.add('s_lshl_b32 s34, s82, 15\ns_add_u32 s87, s87, s34\ns_add_u32 s96, s96, s34', 3)
        epi.add('s_lshl_b32 s97, s83, 13\ns_lshl_b32 s34, s82, 12\ns_add_u32 s97, s97, s34', 3)


    MD, ME = 224, 240
    QA, QB = 56, 60
    KF = 12
    SB = [64, 80, 96, 112]
    OA = [128, 144]
    CP = [160, 176]
    T0 = 192
    VT = [[208, 212], [216, 220]]
    PB = [96, 104]
    MA, MB = 52, 53
    VONES, VFLAG = 54, 55
    VBIG, VZ = 9, 11
    def q_attn_prep():
        epi.add('v_and_b32 v2, 31, v1\nv_lshrrev_b32 v3, 5, v1\nv_lshlrev_b32 v3, 2, v3\nv_sub_u32 v4, v2, v3', 4)
        epi.add(f'v_mov_b32 v{VBIG}, {BIG:#x}\nv_mov_b32 v5, 0', 2)
        for r in range(0, 16, 2):
            c0 = 8 * (r >> 2) + (r & 3); c1 = c0 + 1
            epi.add(f'v_cmp_le_i32 s[56:57], {c0}, v4\nv_cmp_le_i32 s[58:59], {c1}, v4\ns_nop 0\n'
                    f'v_cndmask_b32 v{MD+r}, v{VBIG}, v5, s[56:57]\nv_cndmask_b32 v{MD+r+1}, v{VBIG}, v5, s[58:59]', 5)
        for r in range(16): epi.add(f'v_sub_f32 v{ME+r}, v{VBIG}, v{MD+r}')
        lab = a.newlabel('Le')
        def rz():
            a.e(f's_cmp_eq_u32 s53, 0\ns_cbranch_scc1 {lab}_stub')
            a.label(lab)
            def stub():
                a.label(lab + '_stub')
                for r in range(16): a.e(f'v_mov_b32 v{ME+r}, v{VBIG}')
                a.e(f's_branch {lab}')
            a.stub_fns.append(stub)
        epi.add(rz, 2)
        epi.add(f's_cmp_eq_u32 s53, 0\ns_cselect_b32 s34, {BIG:#x}, 0\nv_mov_b32 v{VZ}, s34', 3)
        epi.add(f's_lshl_b32 s34, s20, 11\ns_add_u32 s35, s34, {KOFF}\nv_add_u32 v6, s35, v8', 3)
        epi.add('v_bfe_u32 v2, v1, 2, 2\nv_lshrrev_b32 v3, 5, v1\nv_lshl_add_u32 v2, v3, 2, v2\nv_lshlrev_b32 v2, 5, v2', 4)
        epi.add('v_and_b32 v3, 1, v1\nv_lshl_add_u32 v2, v3, 4, v2\nv_bfe_u32 v3, v1, 1, 1\nv_lshl_add_u32 v2, v3, 3, v2\n'
                f's_lshl_b32 s34, s20, 11\ns_add_u32 s35, s34, {VOFF}\nv_add_u32 v7, s35, v2', 7)
        epi.add('s_lshl_b32 s88, s20, 1\ns_sub_u32 s88, 8, s88\ns_cmp_eq_u32 s53, 0\ns_cselect_b32 s88, s88, 0', 4)
        epi.add('v_bfe_u32 v3, v1, 4, 1\nv_cmp_eq_u32 s[90:91], 1, v3', 2)
        KS = [40, 41, 42, 44]
        for t in range(4):
            epi.add(f's_lshl_b32 s34, s53, 3\ns_lshl_b32 s35, s20, 2\ns_add_u32 s34, s34, s35\ns_add_i32 s34, s34, {t-8}\ns_max_i32 s34, s34, 0\n'
                    f's_lshl_b32 s34, s34, 10\ns_lshl_b32 s35, s52, 16\ns_add_u32 s34, s34, s35\ns_add_u32 s{KS[t]}, s34, {WS_K}', 9)
        epi.add('s_lshl_b32 s34, s53, 3\ns_lshl_b32 s35, s20, 1\ns_add_u32 s99, s34, s35\ns_lshl_b32 s34, s99, 10\ns_lshl_b32 s35, s52, 16\ns_add_u32 s45, s34, s35', 6)
        epi.add('s_lshl_b32 s46, s20, 12\ns_mov_b32 s100, s52\ns_mov_b32 s101, s53', 3)
    def slot_of(s): return s % 9
    VB = 10
    def b_stage_ops(s):
        ops = []
        for uu in range(2):
            tl = 4 * s + uu
            kinds = ['w2' if tl + 2 * rg < 43 else 'wo' for rg in range(2)]
            for hf in range(2):
                def f(uu=uu, hf=hf, tl=tl, kinds=kinds):
                    m0v = BSLOT[slot_of(s)] + uu * 2048 + hf * 1024
                    offw2 = (tl * 16 + hf * 8) * 1024
                    offwo = (((tl - 43) * 16 + hf * 8) * 1024) & 0xffffffff
                    a.e(f's_add_u32 m0, s97, {m0v}'); m0state[0] = None
                    if kinds[0] == kinds[1]:
                        if kinds[0] == 'w2':
                            a.e(f's_add_u32 s98, s87, {offw2}')
                            a.vmem(f'buffer_load_dwordx4 v{VB}, s[8:11], s98 offen lds', ('b', s))
                        else:
                            a.e(f's_add_u32 s98, s96, {offwo}')
                            a.vmem(f'buffer_load_dwordx4 v{VB}, s[92:95], s98 offen lds', ('b', s)) if False else a.vmem(f'buffer_load_dwordx4 v{VB}, s[12:15], s98 offen lds', ('b', s))
                    else:
                        l1 = a.newlabel('Lb'); l2 = a.newlabel('Lb')
                        a.e(f's_cmp_eq_u32 s82, 0\ns_cbranch_scc0 {l1}')
                        a.e(f's_add_u32 s98, s87, {offw2}\nbuffer_load_dwordx4 v{VB}, s[8:11], s98 offen lds\ns_branch {l2}')
                        a.label(l1)
                        a.e(f's_add_u32 s98, s96, {offwo}\nbuffer_load_dwordx4 v{VB}, s[12:15], s98 offen lds')
                        a.label(l2)
                        a.vm.append(('b', s)); a.vm_ever.add(('b', s))
                ops.append((('b', s), f))
        return ops

    q_store_params(); q_roles(); q_stats()
    while len(epi):
        epi.run(a, 5); vs.poll()
    vs.force([('x', 0), ('w', 0)])
    a.vm_wait([('x', 0), ('w', 0)])
    a.e('s_barrier')
    stamp('bar0')
    read_xa(0); read_w(0, 0); read_w(0, 1); read_w(0, 2)
    q_stats2()
    ld1 = f'buffer_load_dword v39, v12, s[16:19], s50 offen {STF}'
    for n in range(64):
        c, j = divmod(n, 4)
        part = c // 8
        if j == 0:
            if c + 3 < 8:
                for tg, f in dma_x_ops(c + 3): vs.add(tg, f, XC, dl=4*(c+3))
            if c + 4 < 16:
                for tg, f in dma_w_ops(c + 4): vs.add(tg, f, WC if c + 4 < 11 else P['wc2'], dl=4*(c+4))
        stamp(f'n{n}') if ((P or {}).get('stamps') and f'n{n}' in P['stamps']) else None
        if n == 19: epi.drain(a)
        if n in (2, 8, 14) and touches: touches.pop(0)()
        if n == 22:
            a.e(f'v_and_b32 v2, 31, v1\nv_lshlrev_b32 v38, 3, v2\ns_lshl_b32 s50, s39, 8\ns_add_u32 s50, s50, {WS_S}')
            a.vmem(f'buffer_load_dwordx2 v[106:107], v38, s[16:19], s50 offen {STF}', 'srec')
        if n == 30:
            a.vm_wait('srec')
            poll_check(a, 107, None, f'buffer_load_dwordx2 v[106:107], v38, s[16:19], s50 offen {STF}')
            a.e(f'v_lshlrev_b32 v{NMEAN}, 16, v106\nv_and_b32 v{RSTD}, 0xffff0000, v106')
            a.e(f'v_rcp_f32 v{RSTD}, v{RSTD}\nv_xor_b32 v{NMEAN}, 0x80000000, v{NMEAN}')
        if n == 33:
            epi.drain(a)
            epi_burst(0)
            stamp('st0iss') if ((P or {}).get('stamps') and 'st0iss' in P['stamps']) else None
            a.e(f's_lshl_b32 s34, s53, 1\ns_sub_u32 s34, s34, 2')
            a.e('v_lshrrev_b32 v2, 4, v1\nv_add_u32 v2, s34, v2\nv_cmp_le_i32 s[54:55], 0, v2\nv_max_i32 v2, 0, v2')
            a.e('v_and_b32 v3, 15, v1\nv_lshlrev_b32 v2, 6, v2\nv_lshl_add_u32 v12, v3, 2, v2')
            a.e('s_mul_i32 s34, s52, 43691\ns_lshr_b32 s34, s34, 18')
            a.e('s_add_u32 s35, s52, 32\ns_mul_i32 s35, s35, 43691\ns_lshr_b32 s35, s35, 18')
            a.e('s_add_u32 s36, s52, 64\ns_mul_i32 s36, s36, 43691\ns_lshr_b32 s36, s36, 18')
            a.e('v_cmp_eq_u32 s[56:57], s34, v3\nv_cmp_eq_u32 s[58:59], s35, v3\nv_cmp_eq_u32 vcc, s36, v3')
            a.e('s_nop 2\ns_or_b64 s[56:57], s[56:57], s[58:59]\ns_or_b64 s[56:57], s[56:57], vcc\ns_and_b64 s[54:55], s[54:55], s[56:57]')
            a.e(f's_mov_b32 s50, {WS_F}\ns_cmp_eq_u32 s20, 0\ns_cselect_b32 s50, s50, {OOB - 4096:#x}')
            q_attn_prep()
        if n == P['n_b1']:
            srd(a, 8, P_W2, 1376 * 512 * 2)
            a.e('v_lshrrev_b32 v2, 3, v1\nv_lshlrev_b32 v2, 10, v2')
            a.e('v_bfe_u32 v3, v1, 4, 1\nv_lshlrev_b32 v3, 2, v3\nv_and_b32 v38, 7, v1\nv_xor_b32 v3, v3, v38')
            a.e(f'v_lshl_add_u32 v{VB}, v3, 4, v2')
            if 'nob1' not in tog:
                for s in range(3):
                    for tg, f in b_stage_ops(s): vs.add(tg, f, P['bc1'], dl=1000 + 4*s - 2)
        if n == P['n_ld1']: a.vmem(ld1, 'p1')
        if j == 3:
            need = []
            if c < 15: need = [('w', c + 1)] + ([('x', c + 1)] if c + 1 < 8 else [])
            vs.force(need)
            if c == P['f1c']: need = need + ['st0']
            if need: a.vm_wait(need)
            if c == 7: a.lg_wait(('csw', 0))
            if c == 15: a.lg_wait(('csw', 1))
            a.e('s_barrier')
            if c in (3, 7, 11): stamp(f'c{c}')
            if c == P['f1c']:
                stamp('st0ack') if ((P or {}).get('stamps') and 'st0ack' in P['stamps']) else None
                a.e(f's_lshl_b32 s34, s21, 6\ns_lshl_b32 s35, s22, 2\ns_add_u32 s34, s34, s35\ns_add_u32 s34, s34, {WS_F}')
                a.e(f'v_cmp_eq_u32 vcc, 0, v0\nv_mov_b32 v2, {OOB:#x}\nv_mov_b32 v3, 0\nv_mov_b32 v39, s{S_NONCE}')
                a.e('v_cndmask_b32 v38, v2, v3, vcc')
                a.vmem(f'buffer_store_dword v39, v38, s[16:19], s34 offen {STF}', 'f1')
            if c == 7: q_cs_stage2(0)
            if c == 15: q_cs_stage2(1)
        for i in range(3):
            acc = ACC[part] + 16 * i
            w = WF[n & 1] + 4 * i
            cin = '0' if (n % 32) == 0 else f'v[{acc}:{acc+15}]'
            a.lg_wait([('rw', n, i)] + ([('rxa', n)] if (i == 0 and c < 8) else []))
            a.e(f'v_mfma_f32_32x32x16_bf16 v[{acc}:{acc+15}], v[{w}:{w+3}], a[{4*(n%32)}:{4*(n%32)+3}], {cin}')
            budget = P['epi_p1'] if n < 33 else P['epi_budget']
            if n + 1 < 64:
                if i == 0 and (n + 1) // 4 < 8: read_xa(n + 1); budget -= 1
                read_w(n + 1, i); budget -= 1
            if j == 0:
                cs = CSA[i]
                cc = '0' if c % 8 == 0 else f'v[{cs}:{cs+3}]'
                a.e(f'v_mfma_f32_16x16x32_bf16 v[{cs}:{cs+3}], v[40:43], v[{w}:{w+3}], {cc}')
                budget += 2
            t0 = a.t
            vs.poll()
            budget -= (a.t - t0) // 4
            if budget > 0: epi.run(a, budget)
        if j == 1 and c in (7, 15): cs_flush(part)
    epi.drain(a)
    stamp('p1end')

    a.vm_wait('p1')
    poll_check(a, 39, 's[54:55]', ld1, wave0=True)
    a.e('s_barrier')
    stamp('f1ok')
    m0state[0] = None
    KS = [40, 41, 42, 44]
    for t in range(4):
        a.e(f's_add_u32 m0, s46, {KOFF + t*1024}\ns_nop 0')
        a.vmem(f'buffer_load_dwordx4 v8, s[16:19], s{KS[t]} offen {STF} lds', 'k')
    a.vmem(f'buffer_load_dwordx4 v[{QA}:{QA+3}], v8, s[16:19], s45 offen {STF}', 'q')
    a.vmem(f'buffer_load_dwordx4 v[{QB}:{QB+3}], v8, s[16:19], s45 offen offset:1024 {STF}', 'q')
    for t in range(4):
        a.e(f's_add_u32 m0, s46, {VOFF + t*1024}\ns_add_u32 s34, s{KS[t]}, {WS_V - WS_K}')
        a.vmem(f'buffer_load_dwordx4 v8, s[16:19], s34 offen {STF} lds', 'v')
    a.e(f'v_mov_b32 v2, 0x3f803f80\nv_lshlrev_b32 v3, 2, v0\nv_add_u32 v3, {ONES}, v3')
    a.lds('ds_write_b32 v3, v2', 'ones')
    vs.next_t = a.t + 300
    srd(a, 12, P_WO, 512 * 512 * 2)
    for s_ in range(3 if 'nob1' not in tog else 0, 7):
        for tg, f in b_stage_ops(s_): vs.add(tg, f, P.get('paceT', 80), dl=1000 + 4*s_ - 2)
    epi_burst(1)
    stamp('hepi')
    a.e(f'v_and_b32 v3, 15, v1\nv_lshlrev_b32 v3, 3, v3\nv_add_u32 v{VONES}, {ONES}, v3')
    CZ = CP[0]
    for r in range(16): a.e(f'v_mov_b32 v{CZ+r}, v{VZ}')
    vs.poll()
    a.e(f'v_mov_b32 v{MA}, v{VBIG}\nv_mov_b32 v{MB}, v{VBIG}')
    a.e(f'v_cmp_eq_u32 vcc, 0, v1\nv_mov_b32 v2, {OOB:#x}\nv_mov_b32 v3, 0\nv_mov_b32 v4, s{S_NONCE}')
    a.e(f'v_cndmask_b32 v{VFLAG}, v2, v3, vcc')
    a.e(f's_lshl_b32 s47, s39, 6\ns_lshl_b32 s59, s22, 2\ns_add_u32 s47, s47, s59\ns_add_u32 s47, s47, {WS_F2}')
    a.e(f's_lshl_b32 s34, s84, 6\ns_add_u32 s89, s34, {WS_F2}')
    a.e('v_and_b32 v2, 15, v1\nv_lshlrev_b32 v5, 2, v2')
    ld2 = f'buffer_load_dword v3, v5, s[16:19], s89 offen {STF}'
    a.vm_wait(['k', 'q'])
    a.lg_drain()
    a.e('s_barrier')
    stamp('kvbar')
    Qr = [QA, QB]; M = [MA, MB]
    work = []
    for j in range(10):
        if j <= 8: work.append((j, 0))
        if j >= 1: work.append((j, 1))
    def read_k(j):
        a.lds(f'ds_read_b128 v[{KF+4*j}:{KF+4*j+3}], v6 offset:{j*1024}', ('k', j))
    def thresh(j, writes):
        lab = a.newlabel('Lt')
        a.e(f's_cmp_eq_u32 s88, {j}\ns_cbranch_scc1 {lab}_stub')
        a.label(lab)
        def stub():
            a.label(lab + '_stub')
            a.e('s_nop 7')
            for w in writes: a.e(w)
            a.e(f's_nop 1\ns_branch {lab}')
        a.stub_fns.append(stub)
    read_k(0); read_k(1); read_k(2)
    LOOK = 2
    seenj = set()
    def p1_mfma(idx):
        j, wch = work[idx]; sb = SB[idx % 4]; jj = j - wch
        cm = MD if jj == 8 else (ME if jj == 0 else CZ)
        if j not in seenj:
            seenj.add(j)
            if j in (2, 4, 6, 8): thresh(j, [f'v_mov_b32 v{CZ+r}, 0' for r in range(16)])
            a.lg_wait(('k', j))
        a.e(f'v_mfma_f32_32x32x16_bf16 v[{sb}:{sb+15}], v[{KF+4*j}:{KF+4*j+3}], v[{Qr[wch]}:{Qr[wch]+3}], v[{cm}:{cm+15}]')
        if wch == 0 and j + 3 < 10: read_k(j + 3)
    def p1_max(idx):
        j, wch = work[idx]; sb = SB[idx % 4]; m = M[wch]
        for q in range(8): a.e(f'v_max3_f32 v{m}, v{sb+2*q}, v{sb+2*q+1}, v{m}')
    for idx in range(len(work) + LOOK):
        if idx < len(work): p1_mfma(idx)
        if idx >= LOOK:
            if idx >= len(work) or idx == LOOK: a.e('s_nop 7\ns_nop 3')
            p1_max(idx - LOOK)
        if 'nop1' not in tog: vs.poll()
    stamp('pass1')
    a.vm_wait('v')
    a.e('s_barrier')
    for m in M:
        a.e(f'v_mov_b32 v2, v{m}\ns_nop 1\nv_permlane32_swap_b32 v{m}, v2\nv_max_f32 v{m}, v{m}, v2\nv_sub_f32 v{m}, 0, v{m}')
    for wch in range(2):
        a.e(f's_cmp_eq_u32 s101, 0\ns_cselect_b64 vcc, -1, 0\nv_cndmask_b32 v2, v{M[wch]}, v{VBIG}, vcc')
        for r in range(16): a.e(f'v_mov_b32 v{CP[wch]+r}, v2')
        vs.poll()
    for r in range(16): a.e(f'v_add_f32 v{T0+r}, v{ME+r}, v{MA}')
    vs.poll()
    for r in range(16): a.e(f'v_add_f32 v{ME+r}, v{ME+r}, v{MB}')
    def h_ops():
        ops = []
        for t in range(43):
            def f(t=t):
                if t % 4 == 0 and t: a.e('s_add_u32 s85, s85, 4096')
                a.vmem(f'buffer_load_dwordx4 a[{4*t}:{4*t+3}], v8, s[16:19], s85 offen offset:{(t%4)*1024} {STF}', ('a', t))
            ops.append((('a', t), f))
        return ops
    def f2check():
        a.vm_wait('p2')
        a.e('s_mov_b32 exec_hi, 0\ns_mov_b32 exec_lo, 0xffff')
        poll_check(a, 3, None, ld2)
        a.e('s_mov_b64 exec, -1')
        for k_, (tg, f) in enumerate(h_ops()): vs.add(tg, f, P['paceA'], dl=1000 + k_)
    HPOLL = P.get('hpoll', 10)
    stamp('tuples')
    first = [True, True]
    seenv = set(); seens = set()
    def v_reads(j):
        a.e(f'v_add_u32 v2, {j*1024}, v7\nv_cndmask_b32 v2, v2, v{VONES}, s[90:91]')
        vt = VT[j & 1]
        for mf in range(2):
            for rd in range(2):
                a.lds(f'ds_read_b64_tr_b16 v[{vt[mf]+2*rd}:{vt[mf]+2*rd+1}], v2 offset:{mf*512 + rd*256}', ('v', j))
    def s_mfma(idx):
        j, wch = work[idx]; sb = SB[idx % 2]; jj = j - wch
        if j not in seens:
            seens.add(j)
            if j in (2, 4, 6, 8):
                thresh(j, [f'v_mov_b32 v{CP[w2]+r}, v{M[w2]}' for w2 in range(2) for r in range(16)])
        if jj == 0: ct = T0 if wch == 0 else ME
        elif jj == 8: ct = T0 if wch == 0 else MD
        else: ct = CP[wch]
        a.e(f'v_mfma_f32_32x32x16_bf16 v[{sb}:{sb+15}], v[{KF+4*j}:{KF+4*j+3}], v[{Qr[wch]}:{Qr[wch]+3}], v[{ct}:{ct+15}]')
    def pv(idx, mf):
        j, wch = work[idx]; pb = PB[idx % 2]; vt = VT[j & 1]; o = OA[wch]
        if mf == 0: a.lg_wait(('v', j))
        cin = '0' if (first[wch] and mf == 0) else f'v[{o}:{o+15}]'
        if mf == 0: first[wch] = False
        a.e(f'v_mfma_f32_32x32x16_bf16 v[{o}:{o+15}], v[{vt[mf]}:{vt[mf]+3}], v[{pb+4*mf}:{pb+4*mf+3}], {cin}')
    nW = len(work)
    v_reads(0); seenv.add(0)
    s_mfma(0)
    a.e('s_nop 7\ns_nop 3')
    for idx in range(nW):
        j, wch = work[idx]; sb = SB[idx % 2]; pb = PB[idx % 2]
        if idx == P.get('f2idx', 2):
            a.vm_wait('st1')
            a.e(f'v_mov_b32 v4, s{S_NONCE}')
            a.vmem(f'buffer_store_dword v4, v{VFLAG}, s[16:19], s47 offen {STF}', 'f2')
        if idx == HPOLL - 3: a.vmem(ld2, 'p2')
        if idx == HPOLL: f2check()
        if idx + 1 < nW: s_mfma(idx + 1)
        for q in range(4):
            a.e(f'v_exp_f32 v{sb+q}, v{sb+q}')
            if q == 1: (vs.poll() if 'nop2' not in tog else None)
        if idx >= 1: pv(idx - 1, 0)
        for q in range(4, 8):
            a.e(f'v_exp_f32 v{sb+q}, v{sb+q}')
            if q == 5: (vs.poll() if 'nop2' not in tog else None)
        if idx >= 1: pv(idx - 1, 1)
        jn = work[min(idx + 1, nW - 1)][0]
        if jn not in seenv: v_reads(jn); seenv.add(jn)
        for q in range(8, 16):
            a.e(f'v_exp_f32 v{sb+q}, v{sb+q}')
            if q in (9, 12, 15): (vs.poll() if 'nop2' not in tog else None)
        if idx == 6:
            for r in range(16): a.e(f'v_add_f32 v{T0+r}, v{MD+r}, v{MA}')
        if idx == 8:
            for r in range(16): a.e(f'v_add_f32 v{MD+r}, v{MD+r}, v{MB}')
        for q in range(8):
            a.e(f'v_cvt_pk_bf16_f32 v{pb+q}, v{sb+2*q}, v{sb+2*q+1}')
            if q == 4: (vs.poll() if 'nop2' not in tog else None)
    a.e('s_nop 1')
    pv(nW - 1, 0); pv(nW - 1, 1)
    stamp('pass2')
    a.e(f's_lshl_b32 s58, s99, 5\ns_add_u32 s58, s58, s100\ns_lshl_b32 s58, s58, 10\ns_add_u32 s58, s58, {WS_O}')
    a.e('v_lshrrev_b32 v2, 5, v1\nv_bfe_u32 v3, v1, 2, 2\nv_lshl_add_u32 v2, v2, 2, v3\nv_lshlrev_b32 v2, 7, v2')
    a.e('v_bfe_u32 v4, v1, 4, 1\nv_lshlrev_b32 v4, 5, v4\nv_and_b32 v5, 3, v1\nv_lshl_add_u32 v4, v5, 3, v4\nv_add_u32 v2, v2, v4')
    a.e('s_lshl_b32 s34, s83, 13\nv_add_u32 v2, s34, v2')
    a.e('v_bfe_u32 v3, v1, 3, 1\nv_lshlrev_b32 v3, 6, v3')
    a.e('v_add_u32 v12, v2, v3\nv_xor_b32 v3, 64, v3\nv_add_u32 v13, v2, v3')
    a.e('v_add_u32 v14, 65536, v12\nv_add_u32 v15, 65536, v13\nv_add_u32 v16, 0x20000, v12\nv_add_u32 v17, 0x20000, v13')
    for wch in range(2):
        o = OA[wch]
        a.e(f'v_rcp_f32 v2, v{o+8}\ns_nop 0')
        for q in range(8): a.e(f'v_mul_f32 v{o+q}, v{o+q}, v2')
        b = SB[wch]
        for q in range(4): a.e(f'v_cvt_pk_bf16_f32 v{b+q}, v{o+2*q}, v{o+2*q+1}')
        a.vmem(f'buffer_store_dwordx4 v[{b}:{b+3}], v8, s[16:19], s58 offen {STF}', 'ost')
        if wch == 0: a.e(f's_add_u32 s58, s58, {32*1024}')

    srd(a, 92, P_OUT, 2 << 20)
    a.e('v_and_b32 v2, 31, v1\nv_lshlrev_b32 v2, 10, v2\nv_lshrrev_b32 v3, 5, v1\nv_lshl_add_u32 v18, v3, 3, v2')
    a.e('s_lshl_b32 s37, s84, 15\ns_lshl_b32 s34, s81, 7\ns_add_u32 s37, s37, s34\ns_lshl_b32 s34, s83, 6\ns_add_u32 s37, s37, s34')
    XR = 20
    ACC3 = [160, 176]; WF3 = [64, 72, 80]
    def read_b(t, i):
        s, u = divmod(t, 4)
        base = BSLOT[slot_of(s)] + u * 2048
        for rd in range(2):
            addr = base + rd * 1024
            win = addr >> 16; off = addr & 0xffff
            r = WF3[t % 3] + 4 * i + 2 * rd
            a.lds(f'ds_read_b64_tr_b16 v[{r}:{r+1}], v{12+2*win+i} offset:{off}', ('rb', t, i))
    vs.force([('b', 0), ('b', 1), ('a', 0), ('a', 1), ('a', 2), ('a', 3)])
    a.vm_wait(('b', 0))
    a.e('s_barrier')
    stamp('p3start')
    read_b(0, 0); read_b(0, 1); read_b(1, 0); read_b(1, 1)
    for s in (7, 8):
        for tg, f in b_stage_ops(s): vs.add(tg, f, P['pace3'], dl=1000 + 4*s - 2)
    a.e(f's_lshl_b32 s58, s84, 7\ns_add_u32 s89, s58, {WS_F3}')
    a.e('v_and_b32 v2, 31, v1\nv_lshlrev_b32 v5, 2, v2')
    ld3 = f'buffer_load_dword v3, v5, s[16:19], s89 offen {STF}'
    xr_done = [False]
    for t in range(NSTEP3):
        s, u = divmod(t, 4)
        stamp(f't{t}') if ((P or {}).get('stamps') and f't{t}' in P['stamps']) else None
        t2 = t + 2
        if t2 < NSTEP3 and t2 % 4 == 0:
            s2_ = t2 // 4
            vs.force(('b', s2_))
            a.vm_wait(('b', s2_))
            a.e('s_barrier')
            nxt = s2_ - 2 + 9
            if s2_ >= 2 and nxt < NSTG:
                for tg, f in b_stage_ops(nxt): vs.add(tg, f, P['pace3'], dl=1000 + 4*nxt - 2)
        if t == P.get('t3f', 10):
            a.vm_wait('ost')
            a.e(f's_lshl_b32 s58, s99, 7\ns_lshl_b32 s59, s100, 2\ns_add_u32 s58, s58, s59\ns_add_u32 s58, s58, {WS_F3}')
            a.e(f'v_lshlrev_b32 v2, 7, v1\nv_cmp_gt_u32 vcc, 2, v1\nv_mov_b32 v3, {OOB:#x}\nv_mov_b32 v4, s{S_NONCE}')
            a.e('v_cndmask_b32 v2, v3, v2, vcc')
            a.vmem(f'buffer_store_dword v4, v2, s[16:19], s58 offen {STF}', 'f3')
        if t == P.get('t3ld', 22): a.vmem(ld3, 'p3')
        if t == P.get('t3chk', 28):
            a.vm_wait('p3')
            poll_check(a, 3, None, ld3)
            for tt in range(16):
                def f(tt=tt):
                    if tt % 4 == 0 and tt: a.e('s_add_u32 s86, s86, 4096')
                    a.vmem(f'buffer_load_dwordx4 a[{172+4*tt}:{172+4*tt+3}], v8, s[16:19], s86 offen offset:{(tt%4)*1024} {STF}', ('a', 43 + tt))
                vs.add(('a', 43 + tt), f, P['pace3'], dl=1000 + 43 + tt - 4)
        if t == 40:
            for g in range(4):
                a.vmem(f'buffer_load_dwordx2 v[{XR+2*g}:{XR+2*g+1}], v18, s[4:7], s37 offen offset:{16*g}', 'xr')
        for ta in range(t, min(t + 7, NSTEP3)):
            if vs.has(('a', ta)): vs.force(('a', ta))
        a.vm_wait(('a', t))
        for i in range(2):
            w = WF3[t % 3] + 4 * i
            a.lg_wait(('rb', t, i))
            cin = '0' if t == 0 else f'v[{ACC3[i]}:{ACC3[i]+15}]'
            a.e(f'v_mfma_f32_32x32x16_bf16 v[{ACC3[i]}:{ACC3[i]+15}], v[{w}:{w+3}], a[{4*t}:{4*t+3}], {cin}')
            if t + 2 < NSTEP3: read_b(t + 2, i)
            vs.poll()
    assert len(vs) == 0, len(vs)
    a.lg_drain()
    a.e('s_barrier')
    stamp('p3end')
    a.e('s_nop 7\ns_nop 7')
    a.e('s_lshl_b32 s35, s20, 12\nv_add_u32 v2, s35, v8')
    a.e('s_xor_b32 s36, s20, 2\ns_lshl_b32 s36, s36, 12\nv_add_u32 v3, s36, v8')
    l0 = a.newlabel('Lr'); l1 = a.newlabel('Lr')
    a.e(f's_cmp_eq_u32 s83, 0\ns_cbranch_scc0 {l0}')
    for q in range(4): a.e(f'ds_write_b128 v2, v[{ACC3[1]+4*q}:{ACC3[1]+4*q+3}] offset:{q*1024}')
    a.e(f's_branch {l1}')
    a.label(l0)
    for q in range(4): a.e(f'ds_write_b128 v2, v[{ACC3[0]+4*q}:{ACC3[0]+4*q+3}] offset:{q*1024}')
    for r in range(16): a.e(f'v_mov_b32 v{ACC3[0]+r}, v{ACC3[1]+r}')
    a.label(l1)
    a.e('s_waitcnt lgkmcnt(0)\ns_barrier')
    R = 64
    for q in range(4): a.e(f'ds_read_b128 v[{R+4*q}:{R+4*q+3}], v3 offset:{q*1024}')
    a.vm_wait('xr')
    a.e('s_waitcnt lgkmcnt(0)')
    for r in range(16): a.e(f'v_add_f32 v{ACC3[0]+r}, v{ACC3[0]+r}, v{R+r}')
    for g in range(4):
        for q in range(2):
            x = XR + 2 * g + q; r = ACC3[0] + 4 * g + 2 * q
            a.e(f'v_lshlrev_b32 v2, 16, v{x}\nv_and_b32 v3, 0xffff0000, v{x}')
            a.e(f'v_add_f32 v{r}, v{r}, v2\nv_add_f32 v{r+1}, v{r+1}, v3')
    for g in range(4):
        for q in range(2):
            r = ACC3[0] + 4 * g + 2 * q
            a.e(f'v_cvt_pk_bf16_f32 v{R+2*g+q}, v{r}, v{r+1}')
    for g in range(4):
        a.vmem(f'buffer_store_dwordx2 v[{R+2*g}:{R+2*g+1}], v18, s[92:95], s37 offen offset:{16*g}', 'ost2')
    if a.stamps_on: a.e('s_waitcnt vmcnt(0)')
    stamp('end')
    a.dump_stamps()
    a.label(end)
    a.e('s_endpgm')
    for fn in a.stub_fns: fn()
    a.label('Lcode_end')
    a.est_total = a.t
```

```python
from asmlib import *

WS_Q = 0
WS_K = 2 << 20
WS_V = 4 << 20
WS_H = 6 << 20
WS_O = 12 << 20
WS_F = 15 << 20
WS_SIZE = 16 << 20
QSCALE = 0x3EB8AA3B
import struct
def f2u(x): return struct.unpack('<I', struct.pack('<f', x))[0]
QSCALE = f2u(0.25 * 1.4426950408889634)

def header(a, name):
    a.e(f'.globl {name}\n.p2align 8\n.type {name},@function')
    a.label(name)

def kd(name, nvgpr, accum, nsgpr=102):
    return f'''.amdhsa_kernel {name}
  .amdhsa_next_free_vgpr {nvgpr}
  .amdhsa_next_free_sgpr {nsgpr}
  .amdhsa_accum_offset {accum}
  .amdhsa_group_segment_fixed_size 0
  .amdhsa_kernarg_size 72
  .amdhsa_user_sgpr_count 2
  .amdhsa_user_sgpr_kernarg_segment_ptr 1
  .amdhsa_system_sgpr_workgroup_id_x 1
  .amdhsa_float_denorm_mode_32 3
.end_amdhsa_kernel
'''

def srd(a, s, ptr, size):
    a.e(f's_mov_b32 s{s}, s{ptr}')
    a.e(f's_and_b32 s{s+1}, s{ptr+1}, 0xffff')
    a.e(f's_mov_b32 s{s+2}, {size}')
    a.e(f's_mov_b32 s{s+3}, 0x20000')

NST = 6
WST = 12288
XRING = NST * WST
XSL = 16384
CS_OFF = XRING + 4 * XSL
K1_LDS = CS_OFF + 8192

def phase1(a, name, st_flags='', tog=()):
    header(a, name)
    end = f'{name}_end'
    a.e(f's_cmp_ge_u32 s2, 256\ns_cbranch_scc1 {end}')
    a.stamp()
    a.e('s_load_dwordx4 s[60:63], s[0:1], 0')
    a.e('s_load_dwordx2 s[64:65], s[0:1], 32')
    a.e('s_load_dwordx2 s[66:67], s[0:1], 64')
    a.e('v_and_b32 v1, 63, v0')
    a.e('v_lshrrev_b32 v2, 6, v0')
    a.e('s_and_b32 s32, s2, 7\ns_lshr_b32 s33, s2, 3')
    a.e('v_readfirstlane_b32 s20, v2')
    a.e('s_and_b32 s21, s32, 1\ns_lshl_b32 s21, s21, 3\ns_and_b32 s34, s33, 7\ns_add_u32 s21, s21, s34')
    a.e('s_lshr_b32 s22, s32, 1\ns_lshl_b32 s22, s22, 2\ns_lshr_b32 s34, s33, 3\ns_add_u32 s22, s22, s34')
    a.e('v_lshrrev_b32 v2, 3, v1\nv_lshlrev_b32 v2, 10, v2')
    a.e('v_and_b32 v3, 7, v1\nv_lshrrev_b32 v4, 4, v1\nv_xor_b32 v3, v3, v4')
    a.e('v_lshl_add_u32 v8, v3, 4, v2')
    a.e('v_xor_b32 v3, 4, v3\nv_lshl_add_u32 v9, v3, 4, v2')
    a.e('v_add_u32 v10, 14336, v8\nv_add_u32 v11, 21504, v9\nv_add_u32 v9, 7168, v9')
    a.e('s_mov_b32 s35, 43691\ns_movk_i32 s36, 3072\ns_movk_i32 s37, 2752')
    for t in range(3):
        a.e(f'v_add_u32 v2, {64*t}, v1')
        a.e('v_mul_u32_u24 v3, s35, v2\nv_lshrrev_b32 v3, 19, v3')
        a.e('v_mul_u32_u24 v4, 12, v3\nv_sub_u32 v4, v2, v4\nv_lshlrev_b32 v4, 4, v4')
        if t: a.e(f'v_subrev_u32 v4, {1024*t}, v4')
        a.e(f'v_mad_u32_u24 v{12+t}, v3, s36, v4')
        a.e(f'v_mad_u32_u24 v{15+t}, v3, s37, v4')
    a.e('s_lshl_b32 s23, s21, 7\ns_lshl_b32 s34, s20, 5\ns_add_u32 s23, s23, s34\ns_lshl_b32 s23, s23, 10')
    a.e('s_mul_i32 s24, s20, 49152\ns_mul_i32 s34, s22, 192\ns_add_u32 s24, s24, s34')
    a.e('s_mul_i32 s38, s20, 44032\ns_add_u32 s38, s38, s34')
    a.e('s_add_u32 s47, s21, s22') if 'norot' not in tog else a.e('s_mov_b32 s47, 0')
    a.e('s_mul_i32 s25, s20, 3072')
    a.e(f's_lshl_b32 s26, s20, 12\ns_add_u32 s26, s26, {XRING}')
    a.stamp() if 'pro' in tog else None
    a.e('s_waitcnt lgkmcnt(0)')
    a.stamp() if 'pro' in tog else None
    srd(a, 4, 60, 2 << 20)
    srd(a, 8, 62, 512 * 1536 * 2)
    srd(a, 12, 64, 512 * 1376 * 2)
    srd(a, 16, 66, WS_SIZE)

    def dma_x_ops(c):
        ops = []
        def first():
            a.e(f's_add_u32 m0, s26, {(c % 4) * XSL}')
            a.e(f's_add_u32 s48, s47, {c}\ns_and_b32 s48, s48, 7\ns_lshl_b32 s48, s48, 7\ns_add_u32 s48, s48, s23')
        for t in range(4):
            def f(need_m0=False, t=t):
                if t == 0: first()
                elif need_m0: a.e(f's_add_u32 m0, s26, {(c % 4) * XSL}\ns_nop 0')
                a.vmem(f'buffer_load_dwordx4 v{8+t}, s[4:7], s48 offen offset:{1024*t} lds', ('x', c))
            f.kind = ('x', c)
            ops.append(f)
        return ops
    def dma_w_ops(c):
        ops = []
        def first():
            a.e(f's_add_u32 m0, s25, {(c % NST) * WST}')
            a.e(f's_add_u32 s49, s47, {c}\ns_and_b32 s49, s49, 7')
            if c < 8: a.e(f's_mul_i32 s49, s49, {64*3072}\ns_add_u32 s49, s49, s24')
            else: a.e(f's_mul_i32 s49, s49, {64*2752}\ns_add_u32 s49, s49, s38')
        for t in range(3):
            def f(need_m0=False, t=t):
                if t == 0: first()
                elif need_m0: a.e(f's_add_u32 m0, s25, {(c % NST) * WST}\ns_nop 0')
                if c < 8: a.vmem(f'buffer_load_dwordx4 v{12+t}, s[8:11], s49 offen offset:{1024*t} lds', ('w', c))
                else: a.vmem(f'buffer_load_dwordx4 v{15+t}, s[12:15], s49 offen offset:{1024*t} lds', ('w', c))
            f.kind = ('w', c)
            ops.append(f)
        return ops
    for c in range(3):
        for f in dma_x_ops(c): f()
        for f in dma_w_ops(c): f()
        a.stamp() if 'pro' in tog else None
    for f in dma_w_ops(3): f()
    a.stamp()

    a.e('v_lshrrev_b32 v2, 5, v1')
    a.e('v_bfe_u32 v3, v1, 2, 2')
    a.e('v_lshl_add_u32 v3, v2, 3, v3')
    a.e('v_mul_u32_u24 v3, 192, v3')
    a.e('v_bfe_u32 v4, v1, 4, 1\nv_lshlrev_b32 v4, 5, v4')
    a.e('v_and_b32 v5, 3, v1\nv_lshl_add_u32 v4, v5, 3, v4')
    a.e('v_add_u32 v3, v3, v4')
    a.e('v_and_b32 v4, 31, v1')
    a.e('v_bfe_u32 v5, v1, 1, 3')
    a.e('v_xor_b32 v5, v5, v2\nv_lshlrev_b32 v5, 4, v5')
    a.e('v_lshlrev_b32 v6, 7, v4\nv_add_u32 v6, s26, v6')
    for j in range(4):
        a.e(f's_add_u32 s34, s20, {j}\ns_and_b32 s34, s34, 3')
        a.e(f's_mul_i32 s35, s34, 3072\nv_add_u32 v{18+j}, s35, v3')
        a.e(f's_lshl_b32 s35, s34, 5\nv_xor_b32 v7, s35, v5\nv_add_u32 v{22+j}, v6, v7')
    SUM = 112; SQ = 116; CSA = [[224, 228, 232], [236, 240, 244]]
    a.e('v_mov_b32 v36, 0x3f803f80')
    for r in list(range(112, 120)) + list(range(224, 248)): a.e(f'v_mov_b32 v{r}, 0')
    a.e('v_lshlrev_b32 v40, 4, v1')
    a.e('v_lshrrev_b32 v2, 5, v1\nv_lshlrev_b32 v2, 4, v2\nv_lshl_add_u32 v41, v4, 5, v2')
    CSP = CS_OFF + 4 * 384 * 2
    a.e(f's_mul_i32 s34, s20, 384\ns_add_u32 s35, s34, {CS_OFF}')
    a.e('v_lshl_add_u32 v26, v4, 2, s35')
    a.e(f'v_lshlrev_b32 v27, 2, v1\nv_add_u32 v27, {CS_OFF}, v27')
    a.e(f's_add_u32 s35, s34, {CSP}\nv_lshl_add_u32 v28, v1, 2, s35')
    a.e('v_add_u32 v7, s35, v2')
    a.e('s_lshl_b32 s39, s21, 2\ns_add_u32 s39, s39, s20')
    for i in range(3):
        a.e(f's_mul_i32 s34, s22, 3\ns_add_u32 s34, s34, {i}')
        a.e('s_lshr_b32 s35, s34, 4')
        a.e('s_and_b32 s34, s34, 15\ns_lshl_b32 s34, s34, 17')
        a.e(f's_lshl_b32 s{40+i}, s35, 21\ns_add_u32 s{40+i}, s{40+i}, s34')
        a.e(f's_lshl_b32 s34, s39, 10\ns_add_u32 s{40+i}, s{40+i}, s34')
        a.e(f's_cmp_eq_u32 s35, 0\ns_cselect_b32 s{44+i}, {QSCALE}, 1.0')
        a.e(f's_cmp_eq_u32 s35, 2\ns_cselect_b64 vcc, -1, 0')
        a.e(f'v_cndmask_b32 v{37+i}, v40, v41, vcc')
    a.e(f's_mul_i32 s43, s39, 86\ns_mul_i32 s34, s22, 6\ns_add_u32 s43, s43, s34\ns_lshl_b32 s43, s43, 10\ns_add_u32 s43, s43, {WS_H}')

    XT = [48, 52]; WF = [56, 68]; ACC = [128, 176]
    def BOP(n):
        if 'vgprB' in tog: return 'v[48:51]'
        return f'a[{4*(n%32)}:{4*(n%32)+3}]'
    def read_w(n, i):
        c, j = divmod(n, 4)
        st = (c % NST) * WST
        for rd in range(2):
            r = WF[n & 1] + 4 * i + 2 * rd
            a.lds(f'ds_read_b64_tr_b16 v[{r}:{r+1}], v{18+j} offset:{st + rd*768 + 64*i}', ('rw', n, i))
    def read_xa(n):
        c, j = divmod(n, 4)
        if c < 8: a.lds(f'ds_read_b128 a[{4*n}:{4*n+3}], v{22+j} offset:{(c%4)*XSL}', ('rxa', n))
    def read_xt(n):
        c, j = divmod(n, 4)
        if c < 8: a.lds(f'ds_read_b128 v[{XT[n&1]}:{XT[n&1]+3}], v{22+j} offset:{(c%4)*XSL}', ('rxt', n))
    def reads(n):
        read_xa(n); read_w(n, 0); read_w(n, 1); read_xt(n); read_w(n, 2)

    def epi_tile(part, i, sub):
        acc = ACC[part] + 16 * i
        if sub == 0:
            for g in range(4):
                a.lds(f'ds_read_b128 v[{80+4*g}:{83+4*g}], v7 offset:{part*1536 + i*128 + g*32}', ('cs', part, i))
            return
        a.lg_wait(('cs', part, i))
        if part == 0: a.e(f'v_mul_f32 v46, s{44+i}, v44')
        rs = 46 if part == 0 else 44
        for q in range(8):
            a.e(f'v_pk_fma_f32 v[{80+2*q}:{81+2*q}], v[{80+2*q}:{81+2*q}], v[42:43], v[{acc+2*q}:{acc+2*q+1}] op_sel_hi:[1,0,1]')
        for q in range(8):
            a.e(f'v_pk_mul_f32 v[{80+2*q}:{81+2*q}], v[{80+2*q}:{81+2*q}], v[{rs}:{rs+1}] op_sel_hi:[1,0]')
        for q in range(8):
            a.e(f'v_cvt_pk_bf16_f32 v{96+8*(i&1)+q}, v{80+2*q}, v{81+2*q}')
        if part == 1:
            for q in range(8):
                a.e(f'v_pk_max_i16 v{96+8*(i&1)+q}, v{96+8*(i&1)+q}, 0')
        b = 96 + 8 * (i & 1)
        if part == 0:
            a.vmem(f'buffer_store_dwordx4 v[{b}:{b+3}], v{37+i}, s[16:19], s{40+i} offen {st_flags}', ('st', part, i))
            a.e(f's_add_u32 s{40+i}, s{40+i}, 65536')
            a.vmem(f'buffer_store_dwordx4 v[{b+4}:{b+7}], v{37+i}, s[16:19], s{40+i} offen {st_flags}', ('st', part, i))
        else:
            skip = a.newlabel('Lskip')
            a.e(f's_mul_i32 s34, s22, 3\ns_add_u32 s34, s34, {i}\ns_cmp_ge_u32 s34, 43\ns_cbranch_scc1 {skip}')
            a.e(f'buffer_store_dwordx4 v[{b}:{b+3}], v40, s[16:19], s43 offen offset:0 {st_flags}')
            a.e(f'buffer_store_dwordx4 v[{b+4}:{b+7}], v40, s[16:19], s43 offen offset:1024 {st_flags}')
            a.label(skip)
            a.e('s_add_u32 s43, s43, 2048')

    def finalize_stats():
        S, Q = SUM, SQ
        a.e(f'v_add_f32 v{S}, v{S}, v{S+1}\nv_add_f32 v{S+2}, v{S+2}, v{S+3}\nv_add_f32 v{Q}, v{Q}, v{Q+1}\nv_add_f32 v{Q+2}, v{Q+2}, v{Q+3}')
        a.e(f'v_add_f32 v{S}, v{S}, v{S+2}\nv_add_f32 v{Q}, v{Q}, v{Q+2}')
        a.e(f'v_mov_b32 v{S+1}, v{S}\nv_mov_b32 v{Q+1}, v{Q}\ns_nop 1')
        a.e(f'v_permlane32_swap_b32 v{S}, v{S+1}\nv_permlane32_swap_b32 v{Q}, v{Q+1}')
        a.e(f'v_add_f32 v{S}, v{S}, v{S+1}\nv_add_f32 v{Q}, v{Q}, v{Q+1}')
        a.e(f'v_mul_f32 v{S}, 0x3b000000, v{S}\nv_mul_f32 v{Q}, 0x3b000000, v{Q}')
        a.e(f'v_fma_f32 v{Q}, -v{S}, v{S}, v{Q}\nv_max_f32 v{Q}, 0, v{Q}')
        a.e(f'v_cvt_pk_bf16_f32 v{S}, v{S}, v{S}\nv_cvt_pk_bf16_f32 v{Q}, v{Q}, v{Q}')
        a.e(f'v_and_b32 v{S}, 0xffff0000, v{S}\nv_and_b32 v{Q}, 0xffff0000, v{Q}')
        a.e(f'v_add_f32 v{Q}, {f2u(1e-5):#x}, v{Q}')
        a.e(f'v_cvt_pk_bf16_f32 v{Q}, v{Q}, v{Q}\nv_and_b32 v{Q}, 0xffff0000, v{Q}')
        a.e(f'v_sqrt_f32 v{Q}, v{Q}\nv_sub_f32 v42, 0, v{S}')
        a.e(f'v_cvt_pk_bf16_f32 v{Q}, v{Q}, v{Q}\nv_and_b32 v{Q}, 0xffff0000, v{Q}')
        a.e(f'v_rcp_f32 v44, v{Q}')

    def cs_flush(part):
        for i in range(3):
            b = CSA[part][i]
            a.e(f'v_add_f32 v{b}, v{b}, v{b+1}\nv_add_f32 v{b+2}, v{b+2}, v{b+3}')
        for i in range(3):
            b = CSA[part][i]
            a.e(f'v_add_f32 v{b}, v{b}, v{b+2}')
        for i in range(3):
            b = CSA[part][i]
            a.e(f'v_mov_b32 v{b+1}, v{b}')
        a.e('s_nop 0')
        for i in range(3):
            b = CSA[part][i]
            a.e(f'v_permlane32_swap_b32 v{b}, v{b+1}')
        for i in range(3):
            b = CSA[part][i]
            a.e(f'v_add_f32 v{b}, v{b}, v{b+1}')
        for i in range(3):
            b = CSA[part][i]
            a.lds(f'ds_write_b32 v26, v{b} offset:{part*1536 + i*128}', ('csw', part))
    def cs_stage2_read(part):
        for w in range(4):
            a.lds(f'ds_read_b32 v{80+w}, v27 offset:{part*1536 + w*384}', ('cs2', part))
        for w in range(4):
            a.lds(f'ds_read_b32 v{84+w}, v27 offset:{part*1536 + w*384 + 256}', ('cs2', part))
    def cs_stage2_write(part):
        a.lg_wait(('cs2', part))
        a.e('v_add_f32 v80, v80, v81\nv_add_f32 v82, v82, v83\nv_add_f32 v84, v84, v85\nv_add_f32 v86, v86, v87')
        a.e('v_add_f32 v80, v80, v82\nv_add_f32 v84, v84, v86')
        a.lds(f'ds_write_b32 v28, v80 offset:{part*1536}', ('cs3', part))
        a.e('s_mov_b32 exec_hi, 0')
        a.lds(f'ds_write_b32 v28, v84 offset:{part*1536 + 256}', ('cs3', part))
        a.e('s_mov_b32 exec_hi, -1')

    a.vm_wait([('x', 0), ('w', 0)])
    a.e('s_barrier')
    a.stamp()
    reads(0)
    epi_sched = {}
    epi_sched[32] = [('stats',), ('cs2r', 0)]
    epi_sched[33] = [('cs2w', 0)]
    epi_sched[34] = [('t', 0, 0, 0)]
    epi_sched[35] = [('t', 0, 0, 1), ('t', 0, 1, 0)]
    epi_sched[37] = [('t', 0, 1, 1), ('t', 0, 2, 0)]
    epi_sched[39] = [('t', 0, 2, 1)]
    pending = []
    last_kind = [None]
    def issue_dma(k):
        for _ in range(k):
            if not pending: return
            f = pending.pop(0)
            f(last_kind[0] != f.kind); last_kind[0] = f.kind
    for n in range(64):
        c, j = divmod(n, 4)
        part = c // 8
        if j == 0:
            if c + 3 < 8: pending += dma_x_ops(c + 3)
            if c + 4 < 16 and not ('nodma2' in tog and c + 4 >= 8): pending += dma_w_ops(c + 4)
        if j == 3 and c < 15:
            need = [('w', c + 1)] + ([('x', c + 1)] if c + 1 < 8 else [])
            issue_dma(len(pending)) if False else None
            a.vm_wait(need)
            if c == 7: a.lg_wait(('csw', 0))
            if not ('nobar2' in tog and c >= 8): a.e('s_barrier')
            if c in (3, 7, 11): a.stamp()
        ndma = (len(pending) + (3 - j)) // (4 - j)
        for i in range(3):
            acc = ACC[part] + 16 * i
            w = WF[n & 1] + 4 * i
            cin = '0' if (n % 32) == 0 else f'v[{acc}:{acc+15}]'
            a.lg_wait([('rw', n, i)] + ([('rxa', n)] if (i == 0 and c < 8) else []))
            a.e(f'v_mfma_f32_32x32x16_bf16 v[{acc}:{acc+15}], v[{w}:{w+3}], {BOP(n)}, {cin}')
            if n + 1 < 64:
                if i == 0: read_xa(n + 1)
                read_w(n + 1, i)
                if i == 1: read_xt(n + 1)
            if c < 8 and 'nostats' not in tog:
                xt = XT[n & 1]
                if i == 0:
                    a.lg_wait(('rxt', n))
                    for q in range(4): a.e(f'v_dot2c_f32_bf16 v{SUM+q}, v{xt+q}, v36')
                if i == 1:
                    for q in range(4): a.e(f'v_dot2c_f32_bf16 v{SQ+q}, v{xt+q}, v{xt+q}')
            if j == 0 and not ('nocs' in tog):
                for q in range(4): a.e(f'v_dot2c_f32_bf16 v{CSA[part][i]+q}, v{w+q}, v36')
            if i < ndma or (i == 2 and ndma > 3): issue_dma(1 if i < 2 else max(1, ndma - 2))
        if j == 1 and c in (7, 15): cs_flush(part)
        for act in epi_sched.get(n, []):
            if act[0] == 'stats': finalize_stats()
            elif act[0] == 'cs2r': cs_stage2_read(act[1])
            elif act[0] == 'cs2w': cs_stage2_write(act[1])
            else: epi_tile(act[1], act[2], act[3])
    assert not pending
    a.lg_wait(('csw', 1))
    a.e('s_barrier')
    a.stamp()
    cs_stage2_read(1)
    cs_stage2_write(1)
    a.lg_wait(('cs3', 1))
    for i in range(3):
        epi_tile(1, i, 0)
        epi_tile(1, i, 1)
    a.e('s_waitcnt vmcnt(0)') if a.stamps_on else None
    a.stamp()
    a.dump_stamps()
    a.label(end)
    a.e('s_endpgm')
```

```python
import sys, json
from build_f2 import build
import fused3
import importlib
def run(variants, mod=None, prefix='sw'):
    files = []
    for name, tog, P in variants:
        path = f'exp/{prefix}_{name}.s'
        kw = dict(stamps=True, tog=tog, P=P)
        if mod: kw['mod'] = mod
        build(path, **kw)
        files.append(f'{prefix}_{name}.s')
    print(' '.join(files))
    print(json.dumps(['exp/' + f for f in files]))
if __name__ == '__main__':
    ST=['start','kvbar','pass1','tuples','ifA','ifB','pass2','end']
    V = [('if4', ('iftest',), dict(stamps=ST)), ('if8', ('iftest','if8'), dict(stamps=ST))]
    run(V, mod=fused3)
```

```python
import re

class Asm:
    def __init__(self):
        self.lines = []
        self.vm = []
        self.lg = []
        self.uid = 0
        self.stubs = []
        self.vm_ever = set(); self.lg_ever = set(); self.all_vm = []
    t = 0
    pipe = 0
    def _tick(self, l):
        op = l.split(None, 1)[0]
        if op.endswith(':') or op.startswith(('.', ';')): return
        if op.startswith('v_mfma'):
            dur = 32 if '32x32' in op else (16 if '16x16' in op else 8)
            st = max(self.t, self.pipe)
            self.pipe = st + dur; self.t = st + 8
        elif op in ('v_exp_f32', 'v_rcp_f32', 'v_sqrt_f32', 'v_rsq_f32', 'v_log_f32'): self.t += 8
        elif op.startswith(('v_pk_fma', 'v_pk_mul', 'v_pk_add', 'v_dot2')): self.t = max(self.t, self.pipe) + 8
        elif op == 's_nop': self.t += 4 * (int(l.split()[1], 0) + 1)
        elif op == 's_barrier': self.t += 20
        else: self.t += 4
    def e(self, s):
        for l in s.split('\n'):
            l = l.strip()
            if l:
                self.lines.append(l); self._tick(l)
    def c(self, s):
        self.lines.append('; ' + s)
    def label(self, name):
        self.lines.append(name + ':')
    def newlabel(self, p='L'):
        self.uid += 1
        return f'{p}_{self.uid}'
    def emit_stubs(self):
        for lab in self.stubs:
            self.label(lab + '_stub')
            self.e(f's_nop 7\ns_nop 7\ns_branch {lab}')
        self.stubs = []
    def vmem(self, s, tag=None):
        self.e(s); self.vm.append(tag); self.vm_ever.add(tag); self.all_vm.append(tag)
    def vm_count_after(self, tags):
        if not isinstance(tags, (list, set)): tags = [tags]
        last = -1
        for i, t in enumerate(self.vm):
            if t in tags: last = i
        if last < 0: return None
        return len(self.vm) - 1 - last
    def vm_wait(self, tags, extra=''):
        for t in (tags if isinstance(tags, (list, set)) else [tags]):
            assert t in self.vm_ever or t in self.vm, f'vm_wait on never-issued tag {t}'
        n = self.vm_count_after(tags)
        if n is None: return
        n = min(n, 63)
        self.e(f's_waitcnt vmcnt({n})' + extra)
        self.vm = self.vm[len(self.vm) - n:] if n > 0 else []
    def vm_drain(self):
        self.e('s_waitcnt vmcnt(0)'); self.vm = []
    def lds(self, s, tag=None):
        self.e(s); self.lg.append(tag); self.lg_ever.add(tag)
    def lg_wait(self, tags):
        if not isinstance(tags, (list, set)): tags = [tags]
        for t in tags: assert t in self.lg_ever, f'lg_wait on never-issued tag {t}'
        last = -1
        for i, t in enumerate(self.lg):
            if t in tags: last = i
        if last < 0: return
        n = len(self.lg) - 1 - last
        n = min(n, 15)
        self.e(f's_waitcnt lgkmcnt({n})')
        self.lg = self.lg[len(self.lg) - n:] if n > 0 else []
    def lg_drain(self):
        self.e('s_waitcnt lgkmcnt(0)'); self.lg = []
    nst = 0
    first_store_ok = 0
    early = None
    stamps_on = False
    stamp_mode = 'sgpr'
    def stamp(self):
        if not self.stamps_on: return
        if self.stamp_mode == 'vgpr8':
            self.e(('s_memrealtime' if getattr(self, 'realtime', False) else 's_memtime') + ' s[78:79]\ns_waitcnt lgkmcnt(0)')
            self.lg = []
            self.pending_stamp = True
            if self.nst == 0:
                self.e('s_mov_b32 s102x, 0') if False else None
            self.e(f'v_mov_b32 v2, s78\ns_lshl_b32 s79, s2, 3\ns_add_u32 s79, s79, s20\ns_lshl_b32 s79, s79, 7\ns_add_u32 s79, s79, {(15<<20) + (512<<10) + 4*self.nst}')
            self.e('s_mov_b64 exec, 1')
            if self.nst >= self.first_store_ok:
                self.e('buffer_store_dword v2, v8, s[16:19], s79 offen'); self.vm.append('stamp')
            else:
                self.e(f'v_accvgpr_write_b32 a{80 + self.nst}, v2')
                self.early.append(self.nst)
            self.e('s_mov_b64 exec, -1')
            self.nst += 1
            return
        if self.stamp_mode == 'agpr':
            self.e(('s_memrealtime' if getattr(self, 'realtime', False) else 's_memtime') + ' s[78:79]\ns_waitcnt lgkmcnt(0)')
            self.lg = []
            self.e(f'v_accvgpr_write_b32 a{236 + self.nst}, s78')
            self.nst += 1
            assert self.nst <= 20
            return
        self.e('s_memtime s[70:71]\ns_waitcnt lgkmcnt(0)')
        self.lg = []
        self.e(f's_mov_b32 s{72 + self.nst}, s70')
        self.nst += 1
    def flush_early(self):
        if not self.stamps_on or self.stamp_mode != 'vgpr8': return
        for k in self.early:
            self.e(f'v_accvgpr_read_b32 v2, a{80 + k}\ns_lshl_b32 s79, s2, 3\ns_add_u32 s79, s79, s20\ns_lshl_b32 s79, s79, 7\ns_add_u32 s79, s79, {(15<<20) + (512<<10) + 4*k}')
            self.e('s_mov_b64 exec, 1\nbuffer_store_dword v2, v8, s[16:19], s79 offen\ns_mov_b64 exec, -1'); self.vm.append('stamp')
        self.early = []; self.first_store_ok = 0
    def dump_stamps(self, per_wg=32):
        if not self.stamps_on or self.stamp_mode == 'vgpr8': return
        self.e('s_load_dwordx2 s[92:93], s[0:1], 56\ns_waitcnt lgkmcnt(0)')
        self.e('s_mov_b32 s96, s92\ns_and_b32 s97, s93, 0xffff\ns_mov_b32 s98, 0x100000\ns_mov_b32 s99, 0x20000')
        self.e(f's_mul_i32 s94, s2, {per_wg*4}')
        self.e('v_cmp_eq_u32 vcc, 0, v0\ns_and_saveexec_b64 s[100:101], vcc')
        lab = self.newlabel('Lst')
        self.e(f's_cbranch_execz {lab}')
        self.e('v_mov_b32 v3, 0')
        for k in range(self.nst):
            self.e(f'v_mov_b32 v2, s{72+k}' if self.stamp_mode != 'agpr' else f'v_accvgpr_read_b32 v2, a{236+k}')
            self.e(f'buffer_store_dword v2, v3, s[96:99], s94 offen offset:{4*k}')
        self.label(lab)
        self.e('s_mov_b64 exec, s[100:101]')
    def text(self):
        return '\n'.join(self.lines) + '\n'

_reg = re.compile(r'\b([vas])\[(\d+):(\d+)\]|\b([vas])(\d+)\b')
def regs_of(op):
    out = set()
    for m in _reg.finditer(op):
        if m.group(1):
            for r in range(int(m.group(2)), int(m.group(3)) + 1): out.add((m.group(1), r))
        else:
            out.add((m.group(4), int(m.group(5))))
    if re.search(r'\bvcc\b', op): out.add(('s', 'vcc'))
    if re.search(r'\bm0\b', op): out.add(('s', 'm0'))
    if re.search(r'\bexec\b', op): out.add(('s', 'exec'))
    return out

TRANS = ('v_exp_f32', 'v_log_f32', 'v_rcp_f32', 'v_rsq_f32', 'v_sqrt_f32', 'v_sin_f32', 'v_cos_f32')
def parse(line):
    l = line.split(';')[0].strip()
    if not l or l.endswith(':') or l.startswith('.'): return None
    parts = l.split(None, 1)
    op = parts[0]
    ops = [o.strip() for o in parts[1].split(',')] if len(parts) > 1 else []
    d = dict(op=op, text=l)
    is_mfma = op.startswith('v_mfma')
    is_valu = op.startswith('v_') and not is_mfma
    d['mfma'] = is_mfma; d['valu'] = is_valu
    d['trans'] = op.replace('_e32', '').replace('_e64', '') in TRANS
    wr = set(); rd = set()
    if is_mfma:
        wr = regs_of(ops[0]); d['A'] = regs_of(ops[1]); d['B'] = regs_of(ops[2]); d['C'] = regs_of(ops[3])
        rd = d['A'] | d['B'] | d['C']
        d['passes'] = 8 if '32x32' in op else 4
    elif is_valu:
        if op.startswith('v_cmp'):
            wr = regs_of(ops[0]); rd = set().union(*[regs_of(o) for o in ops[1:]]) if len(ops) > 1 else set()
        elif op.startswith('v_permlane') and 'swap' in op:
            wr = regs_of(ops[0]) | regs_of(ops[1]); rd = set(wr)
        elif op.startswith('v_readfirstlane') or op.startswith('v_readlane'):
            wr = regs_of(ops[0]); rd = regs_of(ops[1])
        else:
            wr = regs_of(ops[0]); rd = set().union(*[regs_of(o) for o in ops[1:]]) if len(ops) > 1 else set()
            if op.startswith(('v_fmac', 'v_dot2c', 'v_pk_fmac')): rd |= wr
            if op.startswith('v_cndmask') and len(ops) == 3: rd.add(('s', 'vcc'))
            if op.startswith(('v_add_co', 'v_sub_co', 'v_addc_co')): wr |= regs_of(ops[1])
    elif op.startswith('ds_'):
        if op.startswith('ds_read') or 'rtn' in op or op.startswith('ds_bpermute') or op.startswith('ds_swizzle'):
            wr = regs_of(ops[0]); rd = set().union(*[regs_of(o) for o in ops[1:]])
        else:
            rd = set().union(*[regs_of(o) for o in ops])
        d['ds'] = True
    elif op.startswith(('buffer_', 'global_')):
        d['vmem'] = True
        if 'load' in op and ' lds' not in l:
            wr = regs_of(ops[0]); rd = set().union(*[regs_of(o) for o in ops[1:]])
        else:
            rd = set().union(*[regs_of(o) for o in ops]) if ops else set()
        if ' lds' in l: rd.add(('s', 'm0'))
        d['store'] = 'store' in op
        d['wide'] = d['store'] and ('x4' in op or 'x3' in op)
    elif op.startswith('s_'):
        d['salu'] = True
        if op in ('s_waitcnt', 's_barrier', 's_nop', 's_endpgm', 's_branch', 's_setprio', 's_sleep') or op.startswith('s_cbranch'):
            pass
        elif op.startswith('s_cmp'):
            rd = set().union(*[regs_of(o) for o in ops])
        else:
            wr = regs_of(ops[0]) if ops else set(); rd = set().union(*[regs_of(o) for o in ops[1:]]) if len(ops) > 1 else set()
    d['wr'] = wr; d['rd'] = rd
    d['ws'] = 1
    if op == 's_nop': d['ws'] = int(ops[0], 0) + 1
    return d

def check_hazards(lines, verbose=True):
    ins = []
    for i, l in enumerate(lines):
        p = parse(l)
        if p: p['ln'] = i; ins.append(p)
    errs = []
    for i, a in enumerate(ins):
        dist = 0
        for j in range(i + 1, min(i + 24, len(ins))):
            b = ins[j]
            need = 0; why = ''
            def chk(n, w):
                nonlocal need, why
                if n > need: need = n; why = w
            if a['valu']:
                vw = {r for r in a['wr'] if r[0] in 'va'}
                sw = {r for r in a['wr'] if r[0] == 's'}
                if b['mfma'] and (vw & b['rd']): chk(2, 'VALU->MFMA')
                if b['valu'] and b['op'].startswith('v_permlane') and (vw & b['rd']): chk(2, 'VALU->permlane')
                if b['valu'] and b['op'].startswith(('v_readfirstlane', 'v_readlane')) and (vw & b['rd']): chk(1, 'VALU->readlane')
                if a['trans'] and b['valu'] and not b['trans'] and (vw & b['rd']): chk(1, 'trans->VALU')
                if a['trans'] and b['mfma'] and (vw & b['rd']): chk(2, 'trans->MFMA')
                if sw and b.get('vmem') and (sw & b['rd']): chk(5, 'VALU sgpr->VMEM')
                if sw and b['valu'] and (sw & b['rd']): chk(2, 'VALU sgpr->VALU')
                if sw and b.get('salu') and (sw & b['rd']): chk(3, 'VALU sgpr->SALU (pad)')
                if 'dpp' in b['text'] or 'row_' in b['text']:
                    if vw & b['rd']: chk(2, 'VALU->DPP')
                if ('op_sel' in a['text'] and not a['op'].startswith('v_pk')) and b['valu'] and (vw & b['rd']): chk(1, 'opsel')
            if a['op'].startswith('v_dot') and not b['op'].startswith('v_dot') and ((a['wr'] & b['rd']) or (a['wr'] & b['wr'])): chk(3, 'DOT->other')
            if a['mfma']:
                P = a['passes']
                D = a['wr']
                raw = {8: 12, 4: 8}[P]
                if b['mfma']:
                    if (D & b['C']) and not (D == b['C'] and b['wr'] == D or D == b['C']): chk({8: 10, 4: 6}[P], 'MFMA D->C partial')
                    if D & (b['A'] | b['B']): chk(raw, 'MFMA D->A/B')
                elif b['valu'] and ((D & b['rd']) or (D & b['wr'])): chk(raw, 'MFMA D->VALU')
                elif (b.get('ds') or b.get('vmem')) and ((D & b['rd']) or (D & b['wr'])): chk(raw, 'MFMA D->MEM')
                if b['valu'] and (a['C'] & b['wr']) and not (D & b['wr']): chk({8: 7, 4: 3}[P], 'MFMA C WAR')
            if a.get('wide') and b['valu']:
                data = regs_of(a['text'].split(None, 1)[1].split(',')[0]) if a['op'].startswith('buffer') else set()
                if data & b['wr']: chk(2, 'store data WAR')
            if a.get('salu') and ('s', 'm0') in a['wr'] and b.get('vmem') and ('s', 'm0') in b['rd']: chk(1, 'M0->DMA')
            if need > dist:
                errs.append((a['ln'], b['ln'], why, need, dist, a['text'], b['text']))
            dist += b['ws']
            if dist >= 20: break
    if verbose:
        for e in errs[:40]:
            print(f'HAZARD {e[2]} need {e[3]} have {e[4]}: [{e[0]}] {e[5]}  ->  [{e[1]}] {e[6]}')
    return errs


from collections import deque
class VStream:
    def __init__(self, a, pace=80):
        self.a = a; self.pace = pace; self.q = []; self.next_t = 0; self.seq = 0
    def add(self, tag, fn, cost=None, dl=0):
        self.seq += 1
        self.q.append([dl, self.seq, tag, fn, cost or self.pace]); self.q.sort(key=lambda x: (x[0], x[1]))
    def _emit(self, i=0):
        it = self.q.pop(i)
        it[3]()
        self.next_t = self.a.t + it[4]
    def poll(self, n=1):
        for _ in range(n):
            if self.a.t < self.next_t or not self.q: return
            self._emit()
    def force(self, tags):
        if not isinstance(tags, (list, set)): tags = [tags]
        idx = -1
        for i, it in enumerate(self.q):
            if it[2] in tags: idx = i
        for _ in range(idx + 1): self._emit()
    def drain(self):
        while self.q: self._emit()
    def has(self, tag): return any(it[2] == tag for it in self.q)
    def __len__(self): return len(self.q)
```

```python
from collections import deque
from asmlib import *
from k1 import f2u, QSCALE, header, kd

WS_Q = 0; WS_K = 2 << 20; WS_V = 4 << 20; WS_H = 6 << 20; WS_O = 12 << 20
WS_F = 15 << 20; WS_F2 = WS_F + 4096; WS_F3 = WS_F + 8192; WS_S = WS_F + 16384; WS_SIZE = 16 << 20
OOB = 0x7ffffff0
BIG = 0xF149F2CA
NST = 6; WST = 12288
XRING = NST * WST
XSL = 16384
CS_OFF = 157440
CSP = CS_OFF + 3072
STATL = CS_OFF + 6144
KOFF = XRING; VOFF = XRING + 16384; ONES = XRING + 32768
BSLOT = [140288, 107520, 123904, 0, 16384, 32768, 49152, 73728, 90112]
LDS_BYTES = 163840
NSTEP3 = 59; NSTG = 15
S_WAVE = 20; S_RB = 21; S_CB = 22; S_NONCE = 23
P_X, P_WQKV, P_WO, P_BX, P_W1, P_W2, P_OUT, P_DBG, P_WS = 60, 62, 64, 66, 68, 70, 72, 74, 76

def srd(a, s, ptr, size):
    a.e(f's_mov_b32 s{s}, s{ptr}\ns_and_b32 s{s+1}, s{ptr+1}, 0xffff\ns_mov_b32 s{s+2}, {size}\ns_mov_b32 s{s+3}, 0x20000')

class Q:
    def __init__(self): self.q = deque()
    def add(self, item, cost=1): self.q.append((cost, item))
    debt = 0
    def run(self, a, budget):
        if self.debt > 0:
            d = min(self.debt, budget); self.debt -= d; budget -= d
        while self.q and budget > 0:
            cost, it = self.q.popleft()
            if callable(it): it()
            else: a.e(it)
            budget -= cost
        if budget < 0 and budget > -10**8: self.debt = -budget
        return budget
    def drain(self, a):
        self.debt = 0
        self.run(a, 10 ** 9); self.debt = 0
    def __len__(self): return len(self.q)

def poll_check(a, vdata, need, load_txt, wave0=False):
    lab = a.newlabel('Lp')
    if wave0: a.e(f's_cmp_lg_u32 s{S_WAVE}, 0\ns_cbranch_scc1 {lab}')
    a.e(f'v_cmp_ne_u32 vcc, s{S_NONCE}, v{vdata}')
    a.e('s_nop 2')
    a.e(f's_and_b64 s[56:57], vcc, {need or "exec"}')
    a.e(f's_cbranch_scc1 {lab}_stub')
    a.label(lab)
    def stub():
        a.label(lab + '_stub')
        a.e('s_mov_b32 s58, 0')
        a.label(lab + '_loop')
        a.e('s_sleep 3')
        a.e(load_txt)
        a.e('s_waitcnt vmcnt(0)')
        a.e(f'v_cmp_ne_u32 vcc, s{S_NONCE}, v{vdata}')
        a.e('s_add_u32 s58, s58, 1\ns_cmp_gt_u32 s58, 0x40000')
        a.e(f's_cbranch_scc1 {lab}')
        a.e(f's_and_b64 s[56:57], vcc, {need or "exec"}')
        a.e(f's_cbranch_scc1 {lab}_loop')
        a.e(f's_branch {lab}')
    a.stub_fns.append(stub)

def fused(a, name, tog=(), P=None):
    _st = a.stamp
    def stamp(nm):
        sel = (P or {}).get('stamps')
        if sel is None or nm in sel:
            if a.stamps_on: a.stamp_names.append(nm)
            _st()
    a.stamp_names = []
    P = dict(rot='rb', xc=24, wc=24, wc2=60, pace3=60, paceA=100, epi_budget=4, epi_p1=6, bc1=90, f1c=11, n_ld1=62, n_b1=40) | (P or {})
    STF = 'sc1'
    a.stub_fns = []; marks = {}; a.marks = marks
    header(a, name)
    end = f'{name}_end'
    vs = VStream(a)
    m0state = [None]
    def set_m0(key, code):
        if m0state[0] != key:
            a.e(code); m0state[0] = key
            return True
        return False
    a.e(f's_cmp_ge_u32 s2, 256\ns_cbranch_scc1 {end}')
    stamp('start')
    a.e('s_load_dwordx16 s[60:75], s[0:1], 0')
    a.e('s_load_dwordx2 s[76:77], s[0:1], 64')
    a.e('s_memtime s[78:79]')
    a.e('v_and_b32 v1, 63, v0\nv_lshrrev_b32 v2, 6, v0')
    a.e('s_and_b32 s32, s2, 7\ns_lshr_b32 s33, s2, 3')
    a.e(f'v_readfirstlane_b32 s{S_WAVE}, v2')
    a.e('v_lshlrev_b32 v8, 4, v1')
    a.e('s_and_b32 s21, s32, 1\ns_lshl_b32 s21, s21, 3\ns_and_b32 s34, s33, 7\ns_add_u32 s21, s21, s34')
    a.e('s_lshr_b32 s22, s32, 1\ns_lshl_b32 s22, s22, 2\ns_lshr_b32 s34, s33, 3\ns_add_u32 s22, s22, s34')
    a.e('v_lshrrev_b32 v2, 3, v1\nv_lshlrev_b32 v2, 10, v2')
    a.e('v_and_b32 v3, 7, v1\nv_lshrrev_b32 v4, 4, v1\nv_xor_b32 v3, v3, v4')
    a.e('v_lshl_add_u32 v9, v3, 4, v2')
    a.e('v_xor_b32 v3, 4, v3\nv_lshl_add_u32 v10, v3, 4, v2')
    a.e('v_add_u32 v11, 14336, v9\nv_add_u32 v12, 21504, v10\nv_add_u32 v10, 7168, v10')
    a.e('s_mov_b32 s35, 43691\ns_movk_i32 s36, 3072')
    for t in range(3):
        a.e(f'v_add_u32 v2, {64*t}, v1' if t else 'v_mov_b32 v2, v1')
        a.e(f'v_mul_u32_u24 v{44+t}, s35, v2\nv_lshrrev_b32 v{44+t}, 19, v{44+t}')
        a.e(f'v_mul_u32_u24 v4, 12, v{44+t}\nv_sub_u32 v4, v2, v4\nv_lshlrev_b32 v{47+t}, 4, v4')
        if t: a.e(f'v_subrev_u32 v{47+t}, {1024*t}, v{47+t}')
        a.e(f'v_mad_u32_u24 v{13+t}, v{44+t}, s36, v{47+t}')
    a.e('s_lshl_b32 s24, s21, 7\ns_lshl_b32 s34, s20, 5\ns_add_u32 s24, s24, s34\ns_lshl_b32 s24, s24, 10')
    a.e('s_mul_i32 s25, s20, 49152\ns_mul_i32 s26, s22, 192\ns_add_u32 s25, s25, s26')
    a.e('s_mul_i32 s27, s20, 3072')
    a.e(f's_lshl_b32 s28, s20, 12\ns_add_u32 s28, s28, {XRING}')
    rotm = P.get('rot', 'rb+cb')
    if rotm == 'rb+cb': a.e('s_add_u32 s29, s21, s22')
    elif rotm == 'rb': a.e('s_mov_b32 s29, s21')
    elif rotm == 'cb': a.e('s_mov_b32 s29, s22')
    elif rotm == 'rb2': a.e('s_lshl_b32 s29, s21, 1')
    elif rotm == 'rb4': a.e('s_lshl_b32 s29, s21, 2')
    else: a.e('s_mov_b32 s29, 0')
    a.e('s_lshl_b32 s30, s21, 7\ns_lshl_b32 s34, s22, 3\ns_add_u32 s30, s30, s34\ns_lshl_b32 s34, s20, 1\ns_add_u32 s31, s30, s34\ns_lshl_b32 s31, s31, 10')
    a.e(f's_or_b32 s34, s2, s20\nv_or_b32 v2, s34, v1\nv_mov_b32 v3, {OOB:#x}\nv_mov_b32 v4, 0\nv_cmp_eq_u32 vcc, 0, v2')
    a.e('s_nop 0\ns_waitcnt lgkmcnt(0)')
    a.e('v_cndmask_b32 v7, v3, v4, vcc')
    srd(a, 4, P_X, 2 << 20)
    srd(a, 8, P_WQKV, 512 * 1536 * 2)

    def dma_x_ops(c):
        ops = []
        for t in range(4):
            def f(t=t):
                if t == 0: a.e(f's_add_u32 s48, s29, {c}\ns_and_b32 s48, s48, 7\ns_lshl_b32 s48, s48, 7\ns_add_u32 s48, s48, s24')
                if set_m0(('x', c), f's_add_u32 m0, s28, {(c % 4) * XSL}') and t: a.e('s_nop 0')
                if t == 0 and a.lines[-1].startswith('s_add_u32 m0'): a.e('s_nop 0')
                a.vmem(f'buffer_load_dwordx4 v{9+t}, s[4:7], s48 offen offset:{1024*t} lds', ('x', c))
            ops.append((('x', c), f))
        return ops
    def dma_w_ops(c):
        ops = []
        for t in range(3):
            def f(t=t):
                if t == 0:
                    a.e(f's_add_u32 s49, s29, {c}\ns_and_b32 s49, s49, 7')
                    if c < 8: a.e(f's_mul_i32 s49, s49, {64*3072}\ns_add_u32 s49, s49, s25')
                    else: a.e(f's_mul_i32 s49, s49, {64*2752}\ns_add_u32 s49, s49, s26')
                if set_m0(('w', c), f's_add_u32 m0, s27, {(c % NST) * WST}'): a.e('s_nop 0')
                if c < 8: a.vmem(f'buffer_load_dwordx4 v{13+t}, s[8:11], s49 offen offset:{1024*t} lds', ('w', c))
                else: a.vmem(f'buffer_load_dwordx4 v{16+t}, s[12:15], s49 offen offset:{1024*t} lds', ('w', c))
            ops.append((('w', c), f))
        return ops
    a.vmem('buffer_load_dwordx4 v[112:115], v8, s[4:7], s31 offen', 'srow')
    a.vmem('buffer_load_dwordx4 v[116:119], v8, s[4:7], s31 offen offset:1024', 'srow')
    for _, f in dma_x_ops(0): f()
    for _, f in dma_w_ops(0): f()
    if P.get('touch', 1):
        a.e('s_lshl_b32 s51, s2, 2\ns_add_u32 s51, s51, s20\ns_mul_i32 s50, s51, 1536')
        a.vmem('buffer_load_dwordx4 v[120:123], v8, s[8:11], s50 offen', 'tch')
        a.vmem('buffer_load_dwordx4 v[120:123], v8, s[8:11], s50 offen offset:512', 'tch')
    srd(a, 88, P_DBG, 256)
    a.e('s_or_b32 s78, s78, 1\nv_mov_b32 v5, s78')
    a.vmem('buffer_store_dword v5, v7, s[88:91], 0 offen sc0 sc1', 'nst')
    a.e('v_mov_b32 v7, 0')
    stamp('pro1')
    XC, WC = P['xc'], P['wc']
    vs.next_t = a.t + P.get('pro_gap', 150)
    for c in (1, 2):
        for tg, f in dma_x_ops(c): vs.add(tg, f, XC, dl=4*c)
        for tg, f in dma_w_ops(c): vs.add(tg, f, WC, dl=4*c)
    for tg, f in dma_w_ops(3): vs.add(tg, f, WC, dl=12)
    def E(txt):
        for l in txt.split('\n'):
            a.e(l)
            if not l.startswith(('v_cmp', 's_cmp', 's_add_u32 m0', 's_cselect')): vs.poll()
    E('v_lshrrev_b32 v2, 5, v1\nv_bfe_u32 v3, v1, 2, 2\nv_lshl_add_u32 v3, v2, 3, v3\nv_mul_u32_u24 v3, 192, v3')
    E('v_bfe_u32 v4, v1, 4, 1\nv_lshlrev_b32 v4, 5, v4\nv_and_b32 v5, 3, v1\nv_lshl_add_u32 v4, v5, 3, v4\nv_add_u32 v3, v3, v4')
    E('v_and_b32 v4, 31, v1\nv_bfe_u32 v5, v1, 1, 3\nv_xor_b32 v5, v5, v2\nv_lshlrev_b32 v5, 4, v5')
    E('v_lshlrev_b32 v38, 7, v4\nv_add_u32 v38, s28, v38')
    for j in range(4):
        a.e(f's_add_u32 s34, s20, {j}\ns_and_b32 s34, s34, 3')
        a.e(f's_mul_i32 s35, s34, 3072\nv_add_u32 v{19+j}, s35, v3')
        a.e(f's_lshl_b32 s35, s34, 5\nv_xor_b32 v39, s35, v5\nv_add_u32 v{23+j}, v38, v39')
        vs.poll()
    a.e('s_movk_i32 s37, 2752')
    for t in range(3): E(f'v_mad_u32_u24 v{16+t}, v{44+t}, s37, v{47+t}')
    a.e('s_mul_i32 s34, s20, 44032\ns_add_u32 s26, s26, s34')
    E('v_and_b32 v3, 3, v1\nv_bfe_u32 v38, v1, 2, 1\nv_bfe_u32 v5, v1, 4, 1\nv_xor_b32 v38, v38, v5\nv_or_b32 v3, v3, v38')
    a.e('v_cmp_eq_u32 vcc, 0, v3\nv_mov_b32 v5, 0x3f803f80\ns_nop 0\nv_cndmask_b32 v40, 0, v5, vcc')
    E('v_mov_b32 v41, v40\nv_mov_b32 v42, v40\nv_mov_b32 v43, v40')
    a.e(f's_mul_i32 s34, s20, 384\ns_add_u32 s35, s34, {CS_OFF}')
    a.e('v_lshl_add_u32 v27, v4, 2, s35')
    a.e(f'v_lshlrev_b32 v28, 2, v1\nv_add_u32 v28, {CS_OFF}, v28')
    a.e(f's_add_u32 s35, s34, {CSP}\nv_lshl_add_u32 v29, v1, 2, s35')
    a.e('v_lshlrev_b32 v2, 4, v2\nv_add_u32 v30, s35, v2')
    E('v_lshl_add_u32 v37, v4, 5, v2')
    srd(a, 12, P_W1, 512 * 1376 * 2)
    srd(a, 16, P_WS, WS_SIZE)
    if P.get('touch', 1):
        def tw1():
            a.e('s_mul_i32 s50, s51, 1376')
            a.vmem('buffer_load_dwordx4 v[120:123], v8, s[12:15], s50 offen', 'tch')
            a.vmem('buffer_load_dwordx4 v[120:123], v8, s[12:15], s50 offen offset:352', 'tch')
        def tw2():
            srd(a, 92, P_W2, 1376 * 512 * 2)
            a.e('s_mul_i32 s50, s51, 1376')
            a.vmem('buffer_load_dwordx4 v[120:123], v8, s[92:95], s50 offen', 'tch')
            a.vmem('buffer_load_dwordx4 v[120:123], v8, s[92:95], s50 offen offset:352', 'tch')
        def two():
            srd(a, 92, P_WO, 512 * 512 * 2)
            a.e('s_lshl_b32 s50, s51, 9')
            a.vmem('buffer_load_dwordx4 v[120:123], v8, s[92:95], s50 offen', 'tch')
        touches = [tw1, tw2, two]
    else: touches = []
    if 'nopf' not in tog:
        a.e('s_getpc_b64 s[98:99]')
        a.label('Lpf_base')
        a.e('s_lshl_b32 s34, s33, 2\ns_add_u32 s34, s34, s20\ns_min_u32 s34, s34, (Lcode_end-Lpf_base)/1024-1\ns_lshl_b32 s34, s34, 10')
        a.e('s_add_u32 s98, s98, s34\ns_addc_u32 s99, s99, 0')
        a.vmem('global_load_dwordx4 v[120:123], v8, s[98:99]', 'pf')
    stamp('pro2')

    WF = [56, 68]; ACC = [128, 176]; CSA = [44, 48, 52]
    NMEAN, RSTD, RS2 = 34, 36, 38
    def read_w(n, i):
        c, j = divmod(n, 4)
        st = (c % NST) * WST
        for rd in range(2):
            r = WF[n & 1] + 4 * i + 2 * rd
            a.lds(f'ds_read_b64_tr_b16 v[{r}:{r+1}], v{19+j} offset:{st + rd*768 + 64*i}', ('rw', n, i))
    def read_xa(n):
        c, j = divmod(n, 4)
        if c < 8: a.lds(f'ds_read_b128 a[{4*n}:{4*n+3}], v{23+j} offset:{(c%4)*XSL}', ('rxa', n))
    epi = Q()
    def cs_flush(part):
        for i in range(3):
            a.lds(f'ds_write_b32 v27, v{CSA[i]} offset:{part*1536 + i*128}', ('csw', part))
    def q_cs_stage2(part):
        def rd():
            for w in range(4): a.lds(f'ds_read_b32 v{80+w}, v28 offset:{part*1536 + w*384}', ('cs2', part))
        def rd2():
            for w in range(4): a.lds(f'ds_read_b32 v{84+w}, v28 offset:{part*1536 + w*384 + 256}', ('cs2', part))
        epi.add(rd, 4); epi.add(rd2, 4)
        epi.add(lambda: a.lg_wait(('cs2', part)), 1)
        for t in ['v_add_f32 v80, v80, v81', 'v_add_f32 v82, v82, v83', 'v_add_f32 v84, v84, v85', 'v_add_f32 v86, v86, v87',
                  'v_add_f32 v80, v80, v82', 'v_add_f32 v84, v84, v86']: epi.add(t)
        epi.add(lambda: a.lds(f'ds_write_b32 v29, v80 offset:{part*1536}', ('cs3', part)))
        def w2():
            a.e('s_mov_b32 exec_hi, 0')
            a.lds(f'ds_write_b32 v29, v84 offset:{part*1536 + 256}', ('cs3', part))
            a.e('s_mov_b32 exec_hi, -1')
        epi.add(w2, 3)
    def epi_burst(part):
        TSET = [80, 112] if part == 0 else [80, 64]
        def rd(i):
            T_ = TSET[i & 1]
            for g in range(4): a.lds(f'ds_read_b128 v[{T_+4*g}:{T_+4*g+3}], v30 offset:{part*1536 + i*128 + g*32}', ('cs', part, i))
        rd(0); rd(1)
        for i in range(3):
            acc = ACC[part] + 16 * i; b = 96 + 8 * (i & 1); T_ = TSET[i & 1]
            if part == 0: a.e(f'v_mul_f32 v{RS2}, s{44+i}, v{RSTD}')
            rs = RS2 if part == 0 else RSTD
            a.lg_wait(('cs', part, i))
            for q in range(8): a.e(f'v_pk_fma_f32 v[{T_+2*q}:{T_+2*q+1}], v[{T_+2*q}:{T_+2*q+1}], v[{NMEAN}:{NMEAN+1}], v[{acc+2*q}:{acc+2*q+1}] op_sel_hi:[1,0,1]')
            for q in range(8): a.e(f'v_pk_mul_f32 v[{T_+2*q}:{T_+2*q+1}], v[{T_+2*q}:{T_+2*q+1}], v[{rs}:{rs+1}] op_sel_hi:[1,0]')
            for q in range(8): a.e(f'v_cvt_pk_bf16_f32 v{b+q}, v{T_+2*q}, v{T_+2*q+1}')
            if i == 0: rd(2)
            if part == 1:
                for q in range(8): a.e(f'v_pk_max_i16 v{b+q}, v{b+q}, 0')
            if part == 0:
                a.vmem(f'buffer_store_dwordx4 v[{b}:{b+3}], v{31+i}, s[16:19], s{40+i} offen {STF}', 'st0')
                a.e(f's_add_u32 s{40+i}, s{40+i}, 65536')
                a.vmem(f'buffer_store_dwordx4 v[{b+4}:{b+7}], v{31+i}, s[16:19], s{40+i} offen {STF}', 'st0')
            else:
                a.e(f's_mul_i32 s34, s22, 3\ns_add_u32 s34, s34, {i}\ns_cmp_ge_u32 s34, 43\ns_cselect_b32 s35, {OOB - 65536:#x}, s43')
                a.vmem(f'buffer_store_dwordx4 v[{b}:{b+3}], v8, s[16:19], s35 offen offset:0 {STF}', 'st1')
                a.vmem(f'buffer_store_dwordx4 v[{b+4}:{b+7}], v8, s[16:19], s35 offen offset:1024 {STF}', 'st1')
                a.e('s_add_u32 s43, s43, 2048')
                if i == 0: vs.poll()

    def q_stats():
        epi.add(lambda: a.vm_wait('srow'))
        T = 224
        for r in range(2):
            x = 112 + 4 * r
            for q in range(4):
                epi.add(f'v_lshlrev_b32 v{T+16*r+2*q}, 16, v{x+q}'); epi.add(f'v_and_b32 v{T+16*r+2*q+1}, 0xffff0000, v{x+q}')
        SA = [104, 106]; QA_ = [105, 107]
        for r in range(2):
            b = T + 16 * r
            epi.add(f'v_add_f32 v{SA[r]}, v{b}, v{b+1}'); epi.add(f'v_mul_f32 v{QA_[r]}, v{b}, v{b}')
        for q in range(1, 8):
            for r in range(2):
                b = T + 16 * r
                if q >= 2: epi.add(f'v_add_f32 v{SA[r]}, v{SA[r]}, v{b+q}')
                epi.add(f'v_fma_f32 v{QA_[r]}, v{b+q}, v{b+q}, v{QA_[r]}')
        for ctl in ['row_shr:1 row_mask:0xf bank_mask:0xf bound_ctrl:0', 'row_shr:2 row_mask:0xf bank_mask:0xf bound_ctrl:0',
                    'row_shr:4 row_mask:0xf bank_mask:0xf bound_ctrl:0', 'row_shr:8 row_mask:0xf bank_mask:0xf bound_ctrl:0',
                    'row_bcast:15 row_mask:0xa bank_mask:0xf', 'row_bcast:31 row_mask:0xc bank_mask:0xf']:
            epi.add('s_nop 1\n' + '\n'.join(f'v_add_f32_dpp v{r}, v{r}, v{r} {ctl}' for r in [104, 105, 106, 107]), 5)
        for r in range(2):
            S, Qq = SA[r], QA_[r]
            for t in [f'v_mul_f32 v{S}, 0x3b000000, v{S}', f'v_mul_f32 v{Qq}, 0x3b000000, v{Qq}', f'v_fma_f32 v{Qq}, -v{S}, v{S}, v{Qq}',
                      f'v_max_f32 v{Qq}, 0, v{Qq}', f'v_cvt_pk_bf16_f32 v{S}, v{S}, v{S}', f'v_cvt_pk_bf16_f32 v{Qq}, v{Qq}, v{Qq}',
                      f'v_and_b32 v{Qq}, 0xffff0000, v{Qq}', f'v_add_f32 v{Qq}, {f2u(1e-5):#x}, v{Qq}', f'v_cvt_pk_bf16_f32 v{Qq}, v{Qq}, v{Qq}',
                      f'v_and_b32 v{Qq}, 0xffff0000, v{Qq}', f'v_sqrt_f32 v{Qq}, v{Qq}\nv_and_b32 v{S}, 0xffff, v{S}',
                      f'v_cvt_pk_bf16_f32 v{Qq}, v{Qq}, v{Qq}', f'v_and_b32 v{Qq}, 0xffff0000, v{Qq}', f'v_or_b32 v{108+2*r}, v{S}, v{Qq}']:
                epi.add(t)
    def q_stats2():
        lab = a.newlabel('Ln')
        def nchk():
            a.vm_wait('npoll')
            a.e(f'v_readfirstlane_b32 s{S_NONCE}, v6')
            a.e(f's_nop 3\ns_cmp_eq_u32 s{S_NONCE}, 0\ns_cbranch_scc1 {lab}_stub')
            a.label(lab)
        def nstub():
            a.label(lab + '_stub')
            a.e('s_mov_b32 s58, 0')
            a.label(lab + '_loop')
            a.e('s_sleep 1\nbuffer_load_dword v6, v7, s[88:91], 0 offen sc0 sc1\ns_waitcnt vmcnt(0)')
            a.e(f'v_readfirstlane_b32 s{S_NONCE}, v6')
            a.e(f's_add_u32 s58, s58, 1\ns_cmp_gt_u32 s58, 0x40000\ns_cbranch_scc1 {lab}')
            a.e(f's_cmp_eq_u32 s{S_NONCE}, 0\ns_cbranch_scc1 {lab}_loop\ns_branch {lab}')
        a.stub_fns.append(nstub)
        a.vmem('buffer_load_dword v6, v7, s[88:91], 0 offen sc0 sc1', 'npoll')
        epi.add('s_nop 0', P.get('ndelay', 40))
        epi.add(nchk, 5)
        def fin():
            a.e(f'v_mov_b32 v109, s{S_NONCE}\nv_mov_b32 v111, s{S_NONCE}\nv_cmp_eq_u32 vcc, 63, v1\nv_mov_b32 v2, {OOB:#x}\nv_mov_b32 v3, 0\n'
                f'v_cndmask_b32 v2, v2, v3, vcc\ns_lshr_b32 s34, s31, 7\ns_add_u32 s34, s34, {WS_S}')
            a.vmem(f'buffer_store_dwordx4 v[108:111], v2, s[16:19], s34 offen {STF}', 'strec')
        epi.add(fin, 9)

    def q_store_params():
        epi.add('s_lshl_b32 s39, s21, 2\ns_add_u32 s39, s39, s20', 2)
        for i in range(3):
            epi.add(f's_mul_i32 s34, s22, 3\ns_add_u32 s34, s34, {i}\ns_lshr_b32 s35, s34, 4\ns_and_b32 s34, s34, 15\ns_lshl_b32 s34, s34, 17\n'
                    f's_lshl_b32 s{40+i}, s35, 21\ns_add_u32 s{40+i}, s{40+i}, s34\ns_lshl_b32 s34, s39, 10\ns_add_u32 s{40+i}, s{40+i}, s34\n'
                    f's_cmp_eq_u32 s35, 0\ns_cselect_b32 s{44+i}, {QSCALE}, 1.0\ns_cmp_eq_u32 s35, 2\ns_cselect_b64 vcc, -1, 0\n'
                    f'v_cndmask_b32 v{31+i}, v8, v37, vcc', 14)
        epi.add(f's_mul_i32 s43, s39, 86\ns_mul_i32 s34, s22, 6\ns_add_u32 s43, s43, s34\ns_lshl_b32 s43, s43, 10\ns_add_u32 s43, s43, {WS_H}', 5)
    def q_roles():
        epi.add('s_lshl_b32 s52, s32, 2\ns_and_b32 s34, s33, 3\ns_add_u32 s52, s52, s34\ns_lshr_b32 s53, s33, 2', 4)
        epi.add('s_lshl_b32 s80, s32, 2\ns_lshr_b32 s34, s33, 3\ns_add_u32 s80, s80, s34\ns_and_b32 s81, s33, 7', 4)
        epi.add('s_and_b32 s82, s20, 1\ns_lshr_b32 s83, s20, 1\ns_lshl_b32 s84, s80, 1\ns_add_u32 s84, s84, s82', 4)
        epi.add(f's_mul_i32 s85, s84, 86\ns_mul_i32 s34, s83, 43\ns_add_u32 s85, s85, s34\ns_lshl_b32 s85, s85, 10\ns_add_u32 s85, s85, {WS_H}', 5)
        epi.add(f's_lshl_b32 s86, s84, 5\ns_lshl_b32 s34, s83, 4\ns_add_u32 s86, s86, s34\ns_lshl_b32 s86, s86, 10\ns_add_u32 s86, s86, {WS_O}', 5)
        epi.add(f's_mul_i32 s87, s83, {43*16*1024}\ns_lshl_b32 s34, s81, 7\ns_add_u32 s87, s87, s34\ns_lshl_b32 s96, s83, 18\ns_add_u32 s96, s96, s34', 5)
        epi.add('s_lshl_b32 s34, s82, 15\ns_add_u32 s87, s87, s34\ns_add_u32 s96, s96, s34', 3)
        epi.add('s_lshl_b32 s97, s83, 13\ns_lshl_b32 s34, s82, 12\ns_add_u32 s97, s97, s34', 3)


    MD, ME = 224, 240
    QA, QB = 56, 60
    KF = 12
    SB = [64, 80, 96, 112]
    OA = [128, 144]
    CP = [160, 176]
    T0 = 192
    VT = [[208, 212], [216, 220]]
    PB = [96, 104]
    MA, MB = 52, 53
    VONES, VFLAG = 54, 55
    VBIG, VZ = 9, 11
    def q_attn_prep():
        epi.add('v_and_b32 v2, 31, v1\nv_lshrrev_b32 v3, 5, v1\nv_lshlrev_b32 v3, 2, v3\nv_sub_u32 v4, v2, v3', 4)
        epi.add(f'v_mov_b32 v{VBIG}, {BIG:#x}\nv_mov_b32 v5, 0', 2)
        for r in range(0, 16, 2):
            c0 = 8 * (r >> 2) + (r & 3); c1 = c0 + 1
            epi.add(f'v_cmp_le_i32 s[56:57], {c0}, v4\nv_cmp_le_i32 s[58:59], {c1}, v4\ns_nop 0\n'
                    f'v_cndmask_b32 v{MD+r}, v{VBIG}, v5, s[56:57]\nv_cndmask_b32 v{MD+r+1}, v{VBIG}, v5, s[58:59]', 5)
        for r in range(16): epi.add(f'v_sub_f32 v{ME+r}, v{VBIG}, v{MD+r}')
        lab = a.newlabel('Le')
        def rz():
            a.e(f's_cmp_eq_u32 s53, 0\ns_cbranch_scc1 {lab}_stub')
            a.label(lab)
            def stub():
                a.label(lab + '_stub')
                for r in range(16): a.e(f'v_mov_b32 v{ME+r}, v{VBIG}')
                a.e(f's_branch {lab}')
            a.stub_fns.append(stub)
        epi.add(rz, 2)
        epi.add(f's_cmp_eq_u32 s53, 0\ns_cselect_b32 s34, {BIG:#x}, 0\nv_mov_b32 v{VZ}, s34', 3)
        epi.add(f's_lshl_b32 s34, s20, 11\ns_add_u32 s35, s34, {KOFF}\nv_add_u32 v6, s35, v8', 3)
        epi.add('v_bfe_u32 v2, v1, 2, 2\nv_lshrrev_b32 v3, 5, v1\nv_lshl_add_u32 v2, v3, 2, v2\nv_lshlrev_b32 v2, 5, v2', 4)
        epi.add('v_and_b32 v3, 1, v1\nv_lshl_add_u32 v2, v3, 4, v2\nv_bfe_u32 v3, v1, 1, 1\nv_lshl_add_u32 v2, v3, 3, v2\n'
                f's_lshl_b32 s34, s20, 11\ns_add_u32 s35, s34, {VOFF}\nv_add_u32 v7, s35, v2', 7)
        epi.add('s_lshl_b32 s88, s20, 1\ns_sub_u32 s88, 8, s88\ns_cmp_eq_u32 s53, 0\ns_cselect_b32 s88, s88, 0', 4)
        epi.add('v_bfe_u32 v3, v1, 4, 1\nv_cmp_eq_u32 s[90:91], 1, v3', 2)
        KS = [40, 41, 42, 44]
        for t in range(4):
            epi.add(f's_lshl_b32 s34, s53, 3\ns_lshl_b32 s35, s20, 2\ns_add_u32 s34, s34, s35\ns_add_i32 s34, s34, {t-8}\ns_max_i32 s34, s34, 0\n'
                    f's_lshl_b32 s34, s34, 10\ns_lshl_b32 s35, s52, 16\ns_add_u32 s34, s34, s35\ns_add_u32 s{KS[t]}, s34, {WS_K}', 9)
        epi.add('s_lshl_b32 s34, s53, 3\ns_lshl_b32 s35, s20, 1\ns_add_u32 s99, s34, s35\ns_lshl_b32 s34, s99, 10\ns_lshl_b32 s35, s52, 16\ns_add_u32 s45, s34, s35', 6)
        epi.add('s_lshl_b32 s46, s20, 12\ns_mov_b32 s100, s52\ns_mov_b32 s101, s53', 3)
    def slot_of(s): return s % 9
    VB = 10
    def b_stage_ops(s):
        ops = []
        for uu in range(2):
            tl = 4 * s + uu
            kinds = ['w2' if tl + 2 * rg < 43 else 'wo' for rg in range(2)]
            for hf in range(2):
                def f(uu=uu, hf=hf, tl=tl, kinds=kinds):
                    m0v = BSLOT[slot_of(s)] + uu * 2048 + hf * 1024
                    offw2 = (tl * 16 + hf * 8) * 1024
                    offwo = (((tl - 43) * 16 + hf * 8) * 1024) & 0xffffffff
                    a.e(f's_add_u32 m0, s97, {m0v}'); m0state[0] = None
                    if kinds[0] == kinds[1]:
                        if kinds[0] == 'w2':
                            a.e(f's_add_u32 s98, s87, {offw2}')
                            a.vmem(f'buffer_load_dwordx4 v{VB}, s[8:11], s98 offen lds', ('b', s))
                        else:
                            a.e(f's_add_u32 s98, s96, {offwo}')
                            a.vmem(f'buffer_load_dwordx4 v{VB}, s[92:95], s98 offen lds', ('b', s)) if False else a.vmem(f'buffer_load_dwordx4 v{VB}, s[12:15], s98 offen lds', ('b', s))
                    else:
                        l1 = a.newlabel('Lb'); l2 = a.newlabel('Lb')
                        a.e(f's_cmp_eq_u32 s82, 0\ns_cbranch_scc0 {l1}')
                        a.e(f's_add_u32 s98, s87, {offw2}\nbuffer_load_dwordx4 v{VB}, s[8:11], s98 offen lds\ns_branch {l2}')
                        a.label(l1)
                        a.e(f's_add_u32 s98, s96, {offwo}\nbuffer_load_dwordx4 v{VB}, s[12:15], s98 offen lds')
                        a.label(l2)
                        a.vm.append(('b', s)); a.vm_ever.add(('b', s))
                ops.append((('b', s), f))
        return ops

    q_store_params(); q_roles(); q_stats()
    while len(epi):
        epi.run(a, 5); vs.poll()
    vs.force([('x', 0), ('w', 0)])
    a.vm_wait([('x', 0), ('w', 0)])
    a.e('s_barrier')
    stamp('bar0')
    read_xa(0); read_w(0, 0); read_w(0, 1); read_w(0, 2)
    q_stats2()
    ld1 = f'buffer_load_dword v39, v12, s[16:19], s50 offen {STF}'
    for n in range(64):
        c, j = divmod(n, 4)
        part = c // 8
        if j == 0:
            if c + 3 < 8:
                for tg, f in dma_x_ops(c + 3): vs.add(tg, f, XC, dl=4*(c+3))
            if c + 4 < 16:
                for tg, f in dma_w_ops(c + 4): vs.add(tg, f, WC if c + 4 < 11 else P['wc2'], dl=4*(c+4))
        stamp(f'n{n}') if ((P or {}).get('stamps') and f'n{n}' in P['stamps']) else None
        if n == 19: epi.drain(a)
        if n in (2, 8, 14) and touches: touches.pop(0)()
        if n == 22:
            a.e(f'v_and_b32 v2, 31, v1\nv_lshlrev_b32 v38, 3, v2\ns_lshl_b32 s50, s39, 8\ns_add_u32 s50, s50, {WS_S}')
            a.vmem(f'buffer_load_dwordx2 v[106:107], v38, s[16:19], s50 offen {STF}', 'srec')
        if n == 30:
            a.vm_wait('srec')
            poll_check(a, 107, None, f'buffer_load_dwordx2 v[106:107], v38, s[16:19], s50 offen {STF}')
            a.e(f'v_lshlrev_b32 v{NMEAN}, 16, v106\nv_and_b32 v{RSTD}, 0xffff0000, v106')
            a.e(f'v_rcp_f32 v{RSTD}, v{RSTD}\nv_xor_b32 v{NMEAN}, 0x80000000, v{NMEAN}')
        if n == 33:
            epi.drain(a)
            epi_burst(0)
            stamp('st0iss') if ((P or {}).get('stamps') and 'st0iss' in P['stamps']) else None
            a.e(f's_lshl_b32 s34, s53, 1\ns_sub_u32 s34, s34, 2')
            a.e('v_lshrrev_b32 v2, 4, v1\nv_add_u32 v2, s34, v2\nv_cmp_le_i32 s[54:55], 0, v2\nv_max_i32 v2, 0, v2')
            a.e('v_and_b32 v3, 15, v1\nv_lshlrev_b32 v2, 6, v2\nv_lshl_add_u32 v12, v3, 2, v2')
            a.e('s_mul_i32 s34, s52, 43691\ns_lshr_b32 s34, s34, 18')
            a.e('s_add_u32 s35, s52, 32\ns_mul_i32 s35, s35, 43691\ns_lshr_b32 s35, s35, 18')
            a.e('s_add_u32 s36, s52, 64\ns_mul_i32 s36, s36, 43691\ns_lshr_b32 s36, s36, 18')
            a.e('v_cmp_eq_u32 s[56:57], s34, v3\nv_cmp_eq_u32 s[58:59], s35, v3\nv_cmp_eq_u32 vcc, s36, v3')
            a.e('s_nop 2\ns_or_b64 s[56:57], s[56:57], s[58:59]\ns_or_b64 s[56:57], s[56:57], vcc\ns_and_b64 s[54:55], s[54:55], s[56:57]')
            a.e(f's_mov_b32 s50, {WS_F}\ns_cmp_eq_u32 s20, 0\ns_cselect_b32 s50, s50, {OOB - 4096:#x}')
            q_attn_prep()
        if n == P['n_b1']:
            srd(a, 8, P_W2, 1376 * 512 * 2)
            a.e('v_lshrrev_b32 v2, 3, v1\nv_lshlrev_b32 v2, 10, v2')
            a.e('v_bfe_u32 v3, v1, 4, 1\nv_lshlrev_b32 v3, 2, v3\nv_and_b32 v38, 7, v1\nv_xor_b32 v3, v3, v38')
            a.e(f'v_lshl_add_u32 v{VB}, v3, 4, v2')
            if 'nob1' not in tog:
                for s in range(3):
                    for tg, f in b_stage_ops(s): vs.add(tg, f, P['bc1'], dl=1000 + 4*s - 2)
        if n == P['n_ld1']: a.vmem(ld1, 'p1')
        if j == 3:
            need = []
            if c < 15: need = [('w', c + 1)] + ([('x', c + 1)] if c + 1 < 8 else [])
            vs.force(need)
            if c == P['f1c']: need = need + ['st0']
            if need: a.vm_wait(need)
            if c == 7: a.lg_wait(('csw', 0))
            if c == 15: a.lg_wait(('csw', 1))
            a.e('s_barrier')
            if c in (3, 7, 11): stamp(f'c{c}')
            if c == P['f1c']:
                stamp('st0ack') if ((P or {}).get('stamps') and 'st0ack' in P['stamps']) else None
                a.e(f's_lshl_b32 s34, s21, 6\ns_lshl_b32 s35, s22, 2\ns_add_u32 s34, s34, s35\ns_add_u32 s34, s34, {WS_F}')
                a.e(f'v_cmp_eq_u32 vcc, 0, v0\nv_mov_b32 v2, {OOB:#x}\nv_mov_b32 v3, 0\nv_mov_b32 v39, s{S_NONCE}')
                a.e('v_cndmask_b32 v38, v2, v3, vcc')
                a.vmem(f'buffer_store_dword v39, v38, s[16:19], s34 offen {STF}', 'f1')
            if c == 7: q_cs_stage2(0)
            if c == 15: q_cs_stage2(1)
        for i in range(3):
            acc = ACC[part] + 16 * i
            w = WF[n & 1] + 4 * i
            cin = '0' if (n % 32) == 0 else f'v[{acc}:{acc+15}]'
            a.lg_wait([('rw', n, i)] + ([('rxa', n)] if (i == 0 and c < 8) else []))
            a.e(f'v_mfma_f32_32x32x16_bf16 v[{acc}:{acc+15}], v[{w}:{w+3}], a[{4*(n%32)}:{4*(n%32)+3}], {cin}')
            budget = P['epi_p1'] if n < 33 else P['epi_budget']
            if n + 1 < 64:
                if i == 0 and (n + 1) // 4 < 8: read_xa(n + 1); budget -= 1
                read_w(n + 1, i); budget -= 1
            if j == 0:
                cs = CSA[i]
                cc = '0' if c % 8 == 0 else f'v[{cs}:{cs+3}]'
                a.e(f'v_mfma_f32_16x16x32_bf16 v[{cs}:{cs+3}], v[40:43], v[{w}:{w+3}], {cc}')
                budget += 2
            t0 = a.t
            vs.poll()
            budget -= (a.t - t0) // 4
            if budget > 0: epi.run(a, budget)
        if j == 1 and c in (7, 15): cs_flush(part)
    epi.drain(a)
    stamp('p1end')

    a.vm_wait('p1')
    poll_check(a, 39, 's[54:55]', ld1, wave0=True)
    a.e('s_barrier')
    stamp('f1ok')
    m0state[0] = None
    KS = [40, 41, 42, 44]
    for t in range(4):
        a.e(f's_add_u32 m0, s46, {KOFF + t*1024}\ns_nop 0')
        a.vmem(f'buffer_load_dwordx4 v8, s[16:19], s{KS[t]} offen {STF} lds', 'k')
    a.vmem(f'buffer_load_dwordx4 v[{QA}:{QA+3}], v8, s[16:19], s45 offen {STF}', 'q')
    a.vmem(f'buffer_load_dwordx4 v[{QB}:{QB+3}], v8, s[16:19], s45 offen offset:1024 {STF}', 'q')
    for t in range(4):
        a.e(f's_add_u32 m0, s46, {VOFF + t*1024}\ns_add_u32 s34, s{KS[t]}, {WS_V - WS_K}')
        a.vmem(f'buffer_load_dwordx4 v8, s[16:19], s34 offen {STF} lds', 'v')
    a.e(f'v_mov_b32 v2, 0x3f803f80\nv_lshlrev_b32 v3, 2, v0\nv_add_u32 v3, {ONES}, v3')
    a.lds('ds_write_b32 v3, v2', 'ones')
    vs.next_t = a.t + 300
    srd(a, 12, P_WO, 512 * 512 * 2)
    for s_ in range(3 if 'nob1' not in tog else 0, 7):
        for tg, f in b_stage_ops(s_): vs.add(tg, f, P.get('paceT', 80), dl=1000 + 4*s_ - 2)
    epi_burst(1)
    stamp('hepi')
    a.e(f'v_and_b32 v3, 15, v1\nv_lshlrev_b32 v3, 3, v3\nv_add_u32 v{VONES}, {ONES}, v3')
    CZ = CP[0]
    for r in range(16): a.e(f'v_mov_b32 v{CZ+r}, v{VZ}')
    vs.poll()
    a.e(f'v_mov_b32 v{MA}, v{VBIG}\nv_mov_b32 v{MB}, v{VBIG}')
    a.e(f'v_cmp_eq_u32 vcc, 0, v1\nv_mov_b32 v2, {OOB:#x}\nv_mov_b32 v3, 0\nv_mov_b32 v4, s{S_NONCE}')
    a.e(f'v_cndmask_b32 v{VFLAG}, v2, v3, vcc')
    a.e(f's_lshl_b32 s47, s39, 6\ns_lshl_b32 s59, s22, 2\ns_add_u32 s47, s47, s59\ns_add_u32 s47, s47, {WS_F2}')
    a.e(f's_lshl_b32 s34, s84, 6\ns_add_u32 s89, s34, {WS_F2}')
    a.e('v_and_b32 v2, 15, v1\nv_lshlrev_b32 v5, 2, v2')
    ld2 = f'buffer_load_dword v3, v5, s[16:19], s89 offen {STF}'
    a.vm_wait(['k', 'q'])
    a.lg_drain()
    a.e('s_barrier')
    stamp('kvbar')
    Qr = [QA, QB]; M = [MA, MB]
    work = []
    for j in range(10):
        if j <= 8: work.append((j, 0))
        if j >= 1: work.append((j, 1))
    def read_k(j):
        a.lds(f'ds_read_b128 v[{KF+4*j}:{KF+4*j+3}], v6 offset:{j*1024}', ('k', j))
    def thresh(j, writes):
        lab = a.newlabel('Lt')
        a.e(f's_cmp_eq_u32 s88, {j}\ns_cbranch_scc1 {lab}_stub')
        a.label(lab)
        def stub():
            a.label(lab + '_stub')
            a.e('s_nop 7')
            for w in writes: a.e(w)
            a.e(f's_nop 1\ns_branch {lab}')
        a.stub_fns.append(stub)
    read_k(0); read_k(1); read_k(2)
    LOOK = 2
    seenj = set()
    def p1_mfma(idx):
        j, wch = work[idx]; sb = SB[idx % 4]; jj = j - wch
        cm = MD if jj == 8 else (ME if jj == 0 else CZ)
        if j not in seenj:
            seenj.add(j)
            if j in (2, 4, 6, 8): thresh(j, [f'v_mov_b32 v{CZ+r}, 0' for r in range(16)])
            a.lg_wait(('k', j))
        a.e(f'v_mfma_f32_32x32x16_bf16 v[{sb}:{sb+15}], v[{KF+4*j}:{KF+4*j+3}], v[{Qr[wch]}:{Qr[wch]+3}], v[{cm}:{cm+15}]')
        if wch == 0 and j + 3 < 10: read_k(j + 3)
    def p1_max(idx):
        j, wch = work[idx]; sb = SB[idx % 4]; m = M[wch]
        for q in range(8): a.e(f'v_max3_f32 v{m}, v{sb+2*q}, v{sb+2*q+1}, v{m}')
    for idx in range(len(work) + LOOK):
        if idx < len(work): p1_mfma(idx)
        if idx >= LOOK:
            if idx >= len(work) or idx == LOOK: a.e('s_nop 7\ns_nop 3')
            p1_max(idx - LOOK)
        if 'nop1' not in tog: vs.poll()
    stamp('pass1')
    a.vm_wait('v')
    a.e('s_barrier')
    for m in M:
        a.e(f'v_mov_b32 v2, v{m}\ns_nop 1\nv_permlane32_swap_b32 v{m}, v2\nv_max_f32 v{m}, v{m}, v2\nv_sub_f32 v{m}, 0, v{m}')
    for wch in range(2):
        a.e(f's_cmp_eq_u32 s101, 0\ns_cselect_b64 vcc, -1, 0\nv_cndmask_b32 v2, v{M[wch]}, v{VBIG}, vcc')
        for r in range(16): a.e(f'v_mov_b32 v{CP[wch]+r}, v2')
        vs.poll()
    for r in range(16): a.e(f'v_add_f32 v{T0+r}, v{ME+r}, v{MA}')
    vs.poll()
    for r in range(16): a.e(f'v_add_f32 v{ME+r}, v{ME+r}, v{MB}')
    def h_ops():
        ops = []
        for t in range(43):
            def f(t=t):
                if t % 4 == 0 and t: a.e('s_add_u32 s85, s85, 4096')
                a.vmem(f'buffer_load_dwordx4 a[{4*t}:{4*t+3}], v8, s[16:19], s85 offen offset:{(t%4)*1024} {STF}', ('a', t))
            ops.append((('a', t), f))
        return ops
    def f2check():
        a.vm_wait('p2')
        a.e('s_mov_b32 exec_hi, 0\ns_mov_b32 exec_lo, 0xffff')
        poll_check(a, 3, None, ld2)
        a.e('s_mov_b64 exec, -1')
        for k_, (tg, f) in enumerate(h_ops()): vs.add(tg, f, P['paceA'], dl=1000 + k_)
    HPOLL = P.get('hpoll', 10)
    stamp('tuples')
    first = [True, True]
    seenv = set(); seens = set()
    def v_reads(j):
        a.e(f'v_add_u32 v2, {j*1024}, v7\nv_cndmask_b32 v2, v2, v{VONES}, s[90:91]')
        vt = VT[j & 1]
        for mf in range(2):
            for rd in range(2):
                a.lds(f'ds_read_b64_tr_b16 v[{vt[mf]+2*rd}:{vt[mf]+2*rd+1}], v2 offset:{mf*512 + rd*256}', ('v', j))
    def s_mfma(idx):
        j, wch = work[idx]; sb = SB[idx % 2]; jj = j - wch
        if j not in seens:
            seens.add(j)
            if j in (2, 4, 6, 8):
                thresh(j, [f'v_mov_b32 v{CP[w2]+r}, v{M[w2]}' for w2 in range(2) for r in range(16)])
        if jj == 0: ct = T0 if wch == 0 else ME
        elif jj == 8: ct = T0 if wch == 0 else MD
        else: ct = CP[wch]
        a.e(f'v_mfma_f32_32x32x16_bf16 v[{sb}:{sb+15}], v[{KF+4*j}:{KF+4*j+3}], v[{Qr[wch]}:{Qr[wch]+3}], v[{ct}:{ct+15}]')
    def pv(idx, mf):
        j, wch = work[idx]; pb = PB[idx % 2]; vt = VT[j & 1]; o = OA[wch]
        if mf == 0: a.lg_wait(('v', j))
        cin = '0' if (first[wch] and mf == 0) else f'v[{o}:{o+15}]'
        if mf == 0: first[wch] = False
        a.e(f'v_mfma_f32_32x32x16_bf16 v[{o}:{o+15}], v[{vt[mf]}:{vt[mf]+3}], v[{pb+4*mf}:{pb+4*mf+3}], {cin}')
    nW = len(work)
    v_reads(0); seenv.add(0)
    s_mfma(0)
    a.e('s_nop 7\ns_nop 3')
    for idx in range(nW):
        j, wch = work[idx]; sb = SB[idx % 2]; pb = PB[idx % 2]
        if idx == P.get('f2idx', 2):
            a.vm_wait('st1')
            a.e(f'v_mov_b32 v4, s{S_NONCE}')
            a.vmem(f'buffer_store_dword v4, v{VFLAG}, s[16:19], s47 offen {STF}', 'f2')
        if idx == HPOLL - 3: a.vmem(ld2, 'p2')
        if idx == HPOLL: f2check()
        if idx == 5 and 'iftest' in tog:
            stamp('ifA')
            for q_ in range(256): a.e(f'v_fma_f32 v{192+(q_%8)}, v{192+(q_%8)}, v1, v1' if 'if8' in tog else f'v_add_u32 v{192+(q_%8)}, v{192+(q_%8)}, v1')
            stamp('ifB')
        if idx + 1 < nW: s_mfma(idx + 1)
        for q in range(4):
            a.e(f'v_exp_f32 v{sb+q}, v{sb+q}')
            if q == 1: (vs.poll() if 'nop2' not in tog else None)
        if idx >= 1: pv(idx - 1, 0)
        for q in range(4, 8):
            a.e(f'v_exp_f32 v{sb+q}, v{sb+q}')
            if q == 5: (vs.poll() if 'nop2' not in tog else None)
        if idx >= 1: pv(idx - 1, 1)
        jn = work[min(idx + 1, nW - 1)][0]
        if jn not in seenv: v_reads(jn); seenv.add(jn)
        for q in range(8, 16):
            a.e(f'v_exp_f32 v{sb+q}, v{sb+q}')
            if q in (9, 12, 15): (vs.poll() if 'nop2' not in tog else None)
        if idx == 6:
            for r in range(16): a.e(f'v_add_f32 v{T0+r}, v{MD+r}, v{MA}')
        if idx == 8:
            for r in range(16): a.e(f'v_add_f32 v{MD+r}, v{MD+r}, v{MB}')
        for q in range(8):
            a.e(f'v_cvt_pk_bf16_f32 v{pb+q}, v{sb+2*q}, v{sb+2*q+1}')
            if q == 4: (vs.poll() if 'nop2' not in tog else None)
    a.e('s_nop 1')
    pv(nW - 1, 0); pv(nW - 1, 1)
    stamp('pass2')
    a.e(f's_lshl_b32 s58, s99, 5\ns_add_u32 s58, s58, s100\ns_lshl_b32 s58, s58, 10\ns_add_u32 s58, s58, {WS_O}')
    a.e('v_lshrrev_b32 v2, 5, v1\nv_bfe_u32 v3, v1, 2, 2\nv_lshl_add_u32 v2, v2, 2, v3\nv_lshlrev_b32 v2, 7, v2')
    a.e('v_bfe_u32 v4, v1, 4, 1\nv_lshlrev_b32 v4, 5, v4\nv_and_b32 v5, 3, v1\nv_lshl_add_u32 v4, v5, 3, v4\nv_add_u32 v2, v2, v4')
    a.e('s_lshl_b32 s34, s83, 13\nv_add_u32 v2, s34, v2')
    a.e('v_bfe_u32 v3, v1, 3, 1\nv_lshlrev_b32 v3, 6, v3')
    a.e('v_add_u32 v12, v2, v3\nv_xor_b32 v3, 64, v3\nv_add_u32 v13, v2, v3')
    a.e('v_add_u32 v14, 65536, v12\nv_add_u32 v15, 65536, v13\nv_add_u32 v16, 0x20000, v12\nv_add_u32 v17, 0x20000, v13')
    for wch in range(2):
        o = OA[wch]
        a.e(f'v_rcp_f32 v2, v{o+8}\ns_nop 0')
        for q in range(8): a.e(f'v_mul_f32 v{o+q}, v{o+q}, v2')
        b = SB[wch]
        for q in range(4): a.e(f'v_cvt_pk_bf16_f32 v{b+q}, v{o+2*q}, v{o+2*q+1}')
        a.vmem(f'buffer_store_dwordx4 v[{b}:{b+3}], v8, s[16:19], s58 offen {STF}', 'ost')
        if wch == 0: a.e(f's_add_u32 s58, s58, {32*1024}')

    srd(a, 92, P_OUT, 2 << 20)
    a.e('v_and_b32 v2, 31, v1\nv_lshlrev_b32 v2, 10, v2\nv_lshrrev_b32 v3, 5, v1\nv_lshl_add_u32 v18, v3, 3, v2')
    a.e('s_lshl_b32 s37, s84, 15\ns_lshl_b32 s34, s81, 7\ns_add_u32 s37, s37, s34\ns_lshl_b32 s34, s83, 6\ns_add_u32 s37, s37, s34')
    XR = 20
    ACC3 = [160, 176]; WF3 = [64, 72, 80]
    def read_b(t, i):
        s, u = divmod(t, 4)
        base = BSLOT[slot_of(s)] + u * 2048
        for rd in range(2):
            addr = base + rd * 1024
            win = addr >> 16; off = addr & 0xffff
            r = WF3[t % 3] + 4 * i + 2 * rd
            a.lds(f'ds_read_b64_tr_b16 v[{r}:{r+1}], v{12+2*win+i} offset:{off}', ('rb', t, i))
    vs.force([('b', 0), ('b', 1), ('a', 0), ('a', 1), ('a', 2), ('a', 3)])
    a.vm_wait(('b', 0))
    a.e('s_barrier')
    stamp('p3start')
    read_b(0, 0); read_b(0, 1); read_b(1, 0); read_b(1, 1)
    for s in (7, 8):
        for tg, f in b_stage_ops(s): vs.add(tg, f, P['pace3'], dl=1000 + 4*s - 2)
    a.e(f's_lshl_b32 s58, s84, 7\ns_add_u32 s89, s58, {WS_F3}')
    a.e('v_and_b32 v2, 31, v1\nv_lshlrev_b32 v5, 2, v2')
    ld3 = f'buffer_load_dword v3, v5, s[16:19], s89 offen {STF}'
    xr_done = [False]
    for t in range(NSTEP3):
        s, u = divmod(t, 4)
        stamp(f't{t}') if ((P or {}).get('stamps') and f't{t}' in P['stamps']) else None
        t2 = t + 2
        if t2 < NSTEP3 and t2 % 4 == 0:
            s2_ = t2 // 4
            vs.force(('b', s2_))
            a.vm_wait(('b', s2_))
            a.e('s_barrier')
            nxt = s2_ - 2 + 9
            if s2_ >= 2 and nxt < NSTG:
                for tg, f in b_stage_ops(nxt): vs.add(tg, f, P['pace3'], dl=1000 + 4*nxt - 2)
        if t == P.get('t3f', 10):
            a.vm_wait('ost')
            a.e(f's_lshl_b32 s58, s99, 7\ns_lshl_b32 s59, s100, 2\ns_add_u32 s58, s58, s59\ns_add_u32 s58, s58, {WS_F3}')
            a.e(f'v_lshlrev_b32 v2, 7, v1\nv_cmp_gt_u32 vcc, 2, v1\nv_mov_b32 v3, {OOB:#x}\nv_mov_b32 v4, s{S_NONCE}')
            a.e('v_cndmask_b32 v2, v3, v2, vcc')
            a.vmem(f'buffer_store_dword v4, v2, s[16:19], s58 offen {STF}', 'f3')
        if t == P.get('t3ld', 22): a.vmem(ld3, 'p3')
        if t == P.get('t3chk', 28):
            a.vm_wait('p3')
            poll_check(a, 3, None, ld3)
            for tt in range(16):
                def f(tt=tt):
                    if tt % 4 == 0 and tt: a.e('s_add_u32 s86, s86, 4096')
                    a.vmem(f'buffer_load_dwordx4 a[{172+4*tt}:{172+4*tt+3}], v8, s[16:19], s86 offen offset:{(tt%4)*1024} {STF}', ('a', 43 + tt))
                vs.add(('a', 43 + tt), f, P['pace3'], dl=1000 + 43 + tt - 4)
        if t == 40:
            for g in range(4):
                a.vmem(f'buffer_load_dwordx2 v[{XR+2*g}:{XR+2*g+1}], v18, s[4:7], s37 offen offset:{16*g}', 'xr')
        for ta in range(t, min(t + 7, NSTEP3)):
            if vs.has(('a', ta)): vs.force(('a', ta))
        a.vm_wait(('a', t))
        for i in range(2):
            w = WF3[t % 3] + 4 * i
            a.lg_wait(('rb', t, i))
            cin = '0' if t == 0 else f'v[{ACC3[i]}:{ACC3[i]+15}]'
            a.e(f'v_mfma_f32_32x32x16_bf16 v[{ACC3[i]}:{ACC3[i]+15}], v[{w}:{w+3}], a[{4*t}:{4*t+3}], {cin}')
            if t + 2 < NSTEP3: read_b(t + 2, i)
            vs.poll()
    assert len(vs) == 0, len(vs)
    a.lg_drain()
    a.e('s_barrier')
    stamp('p3end')
    a.e('s_nop 7\ns_nop 7')
    a.e('s_lshl_b32 s35, s20, 12\nv_add_u32 v2, s35, v8')
    a.e('s_xor_b32 s36, s20, 2\ns_lshl_b32 s36, s36, 12\nv_add_u32 v3, s36, v8')
    l0 = a.newlabel('Lr'); l1 = a.newlabel('Lr')
    a.e(f's_cmp_eq_u32 s83, 0\ns_cbranch_scc0 {l0}')
    for q in range(4): a.e(f'ds_write_b128 v2, v[{ACC3[1]+4*q}:{ACC3[1]+4*q+3}] offset:{q*1024}')
    a.e(f's_branch {l1}')
    a.label(l0)
    for q in range(4): a.e(f'ds_write_b128 v2, v[{ACC3[0]+4*q}:{ACC3[0]+4*q+3}] offset:{q*1024}')
    for r in range(16): a.e(f'v_mov_b32 v{ACC3[0]+r}, v{ACC3[1]+r}')
    a.label(l1)
    a.e('s_waitcnt lgkmcnt(0)\ns_barrier')
    R = 64
    for q in range(4): a.e(f'ds_read_b128 v[{R+4*q}:{R+4*q+3}], v3 offset:{q*1024}')
    a.vm_wait('xr')
    a.e('s_waitcnt lgkmcnt(0)')
    for r in range(16): a.e(f'v_add_f32 v{ACC3[0]+r}, v{ACC3[0]+r}, v{R+r}')
    for g in range(4):
        for q in range(2):
            x = XR + 2 * g + q; r = ACC3[0] + 4 * g + 2 * q
            a.e(f'v_lshlrev_b32 v2, 16, v{x}\nv_and_b32 v3, 0xffff0000, v{x}')
            a.e(f'v_add_f32 v{r}, v{r}, v2\nv_add_f32 v{r+1}, v{r+1}, v3')
    for g in range(4):
        for q in range(2):
            r = ACC3[0] + 4 * g + 2 * q
            a.e(f'v_cvt_pk_bf16_f32 v{R+2*g+q}, v{r}, v{r+1}')
    for g in range(4):
        a.vmem(f'buffer_store_dwordx2 v[{R+2*g}:{R+2*g+1}], v18, s[92:95], s37 offen offset:{16*g}', 'ost2')
    if a.stamps_on: a.e('s_waitcnt vmcnt(0)')
    stamp('end')
    a.dump_stamps()
    a.label(end)
    a.e('s_endpgm')
    for fn in a.stub_fns: fn()
    a.label('Lcode_end')
    a.est_total = a.t
```

```python
from collections import deque
from asmlib import *
from k1 import f2u, QSCALE, header, kd
from fused3 import Q, poll_check, srd

WS_Q = 0; WS_K = 2 << 20; WS_V = 4 << 20; WS_H = 6 << 20; WS_O = 12 << 20
WS_F = 15 << 20; WS_F2 = WS_F + 4096; WS_F3 = WS_F + 16384; WS_S = WS_F + 32768; WS_SIZE = 16 << 20
OOB = 0x7ffffff0
BIG = 0xF149F2CA
WSL = 24576
XRING = 3 * WSL
XSL = 32768
CS_OFF = 159232
CSP = CS_OFF + 3072
KOFF = XRING; VOFF = XRING + 16384; ONES = XRING + 32768
BSLOT = [140288, 107520, 123904, 0, 16384, 32768, 49152, 73728, 90112]
LDS_BYTES = 163840
NSTEP3 = 30; NSTG = 15
S_WAVE = 20; S_NONCE = 23
P_X, P_WQKV, P_WO, P_BX, P_W1, P_W2, P_OUT, P_DBG, P_WS = 60, 62, 64, 66, 68, 70, 72, 74, 76
NVGPR = 168; NAGPR = 88

def fused(a, name, tog=(), P=None):
    P0 = P or {}
    _st = a.stamp
    a.stamp_names = []
    def stamp(nm, optional=False):
        sel = P0.get('stamps')
        if (sel is None and not optional) or (sel is not None and nm in sel):
            if a.stamps_on: a.stamp_names.append(nm)
            _st()
    P = dict(rot='rb', xc=16, wc=16, pace3=8, paceA=24, epi_budget=4, touch=1) | P0
    STF = 'sc1'
    a.stub_fns = []
    header(a, name)
    end = f'{name}_end'
    vs = VStream(a)
    m0state = [None]
    def set_m0(key, code):
        if m0state[0] != key:
            a.e(code); m0state[0] = key
            return True
        return False
    a.e(f's_cmp_ge_u32 s2, 256\ns_cbranch_scc1 {end}')
    a.early = []; a.first_store_ok = 10**6
    stamp('start')
    a.e('s_load_dwordx16 s[60:75], s[0:1], 0')
    a.e('s_load_dwordx2 s[76:77], s[0:1], 64')
    a.e('s_memtime s[78:79]')
    a.e('v_and_b32 v1, 63, v0\nv_lshrrev_b32 v2, 6, v0')
    a.e('s_and_b32 s32, s2, 7\ns_lshr_b32 s33, s2, 3')
    a.e(f'v_readfirstlane_b32 s{S_WAVE}, v2')
    a.e('v_lshlrev_b32 v8, 4, v1')
    a.e('s_and_b32 s21, s32, 1\ns_lshl_b32 s21, s21, 3\ns_and_b32 s34, s33, 7\ns_add_u32 s21, s21, s34')
    a.e('s_lshr_b32 s22, s32, 1\ns_lshl_b32 s22, s22, 2\ns_lshr_b32 s34, s33, 3\ns_add_u32 s22, s22, s34')
    a.e('s_and_b32 s38, s20, 3\ns_lshr_b32 s47, s20, 2')
    a.e('v_lshrrev_b32 v2, 3, v1\nv_lshlrev_b32 v2, 10, v2')
    a.e('v_and_b32 v3, 7, v1\nv_lshrrev_b32 v4, 4, v1\nv_xor_b32 v3, v3, v4')
    a.e('v_lshl_add_u32 v9, v3, 4, v2')
    a.e('v_xor_b32 v3, 4, v3\nv_lshl_add_u32 v10, v3, 4, v2')
    a.e('v_add_u32 v11, 14336, v9\nv_add_u32 v12, 21504, v10\nv_add_u32 v10, 7168, v10')
    a.e('s_mov_b32 s35, 43691\ns_movk_i32 s36, 3072')
    for t in range(3):
        a.e(f'v_add_u32 v2, {64*t}, v1' if t else 'v_mov_b32 v2, v1')
        a.e(f'v_mul_u32_u24 v{44+t}, s35, v2\nv_lshrrev_b32 v{44+t}, 19, v{44+t}')
        a.e(f'v_mul_u32_u24 v4, 12, v{44+t}\nv_sub_u32 v4, v2, v4\nv_lshlrev_b32 v{47+t}, 4, v4')
        if t: a.e(f'v_subrev_u32 v{47+t}, {1024*t}, v{47+t}')
        a.e(f'v_mad_u32_u24 v{13+t}, v{44+t}, s36, v{47+t}')
    a.e('s_lshl_b32 s24, s21, 7\ns_lshl_b32 s34, s38, 5\ns_add_u32 s24, s24, s34\ns_lshl_b32 s24, s24, 10')
    a.e('s_mul_i32 s25, s38, 49152\ns_mul_i32 s26, s22, 192\ns_add_u32 s25, s25, s26')
    a.e('s_mul_i32 s27, s38, 3072\ns_mul_i32 s34, s47, 12288\ns_add_u32 s27, s27, s34')
    a.e(f's_lshl_b32 s28, s20, 12\ns_add_u32 s28, s28, {XRING}')
    rotm = P['rot']
    if rotm == 'rb': a.e('s_add_u32 s29, s21, s47')
    elif rotm == 'rb2': a.e('s_lshl_b32 s29, s21, 1\ns_add_u32 s29, s29, s47')
    elif rotm == 'rb+cb': a.e('s_add_u32 s29, s21, s22\ns_add_u32 s29, s29, s47')
    else: a.e('s_mov_b32 s29, s47')
    a.e('s_lshl_b32 s30, s21, 7\ns_lshl_b32 s34, s22, 3\ns_add_u32 s30, s30, s34\ns_add_u32 s30, s30, s20\ns_lshl_b32 s31, s30, 10')
    a.e(f's_or_b32 s34, s2, s20\nv_or_b32 v2, s34, v1\nv_mov_b32 v3, {OOB:#x}\nv_mov_b32 v4, 0\nv_cmp_eq_u32 vcc, 0, v2')
    a.e('s_nop 0\ns_waitcnt lgkmcnt(0)')
    a.e('v_cndmask_b32 v7, v3, v4, vcc')
    srd(a, 4, P_X, 2 << 20)
    srd(a, 8, P_WQKV, 512 * 1536 * 2)

    def dma_x_ops(st):
        ops = []
        for t in range(4):
            def f(t=t):
                if t == 0: a.e(f's_add_u32 s48, s29, {2*st}\ns_and_b32 s48, s48, 7\ns_lshl_b32 s48, s48, 7\ns_add_u32 s48, s48, s24')
                if set_m0(('x', st), f's_add_u32 m0, s28, {(st % 2) * XSL}'): a.e('s_nop 0')
                a.vmem(f'buffer_load_dwordx4 v{9+t}, s[4:7], s48 offen offset:{1024*t} lds', ('x', st))
            ops.append((('x', st), f))
        return ops
    def dma_w_ops(st):
        ops = []
        for t in range(3):
            def f(t=t):
                if t == 0:
                    a.e(f's_add_u32 s49, s29, {2*(st%4)}\ns_and_b32 s49, s49, 7')
                    if st < 4: a.e(f's_mul_i32 s49, s49, {64*3072}\ns_add_u32 s49, s49, s25')
                    else: a.e(f's_mul_i32 s49, s49, {64*2752}\ns_add_u32 s49, s49, s26')
                if set_m0(('w', st), f's_add_u32 m0, s27, {(st % 3) * WSL}'): a.e('s_nop 0')
                if st < 4: a.vmem(f'buffer_load_dwordx4 v{13+t}, s[8:11], s49 offen offset:{1024*t} lds', ('w', st))
                else: a.vmem(f'buffer_load_dwordx4 v{16+t}, s[12:15], s49 offen offset:{1024*t} lds', ('w', st))
            ops.append((('w', st), f))
        return ops
    a.vmem('buffer_load_dwordx4 v[112:115], v8, s[4:7], s31 offen', 'srow')
    for _, f in dma_x_ops(0): f()
    for _, f in dma_w_ops(0): f()
    a.e('s_lshl_b32 s51, s2, 3\ns_add_u32 s51, s51, s20')
    if P['touch'] and P.get('touch0', 1):
        a.e('s_mul_i32 s50, s51, 768')
        a.vmem('buffer_load_dwordx4 v[120:123], v8, s[8:11], s50 offen', 'tch')
    srd(a, 88, P_DBG, 256)
    a.e('s_or_b32 s78, s78, 1\nv_mov_b32 v5, s78')
    a.vmem('buffer_store_dword v5, v7, s[88:91], 0 offen sc0 sc1', 'nst')
    a.e('v_mov_b32 v7, 0')
    stamp('pro1')
    XC, WC = P['xc'], P['wc']
    vs.next_t = a.t + P.get('pro_gap', 60)
    for tg, f in dma_x_ops(1): vs.add(tg, f, XC, dl=4)
    for tg, f in dma_w_ops(1): vs.add(tg, f, WC, dl=4)
    for tg, f in dma_w_ops(2): vs.add(tg, f, WC, dl=8)
    def E(txt):
        for l in txt.split('\n'):
            a.e(l)
            if P.get('propoll', 0) and not l.startswith(('v_cmp', 's_cmp', 's_add_u32 m0', 's_cselect')): vs.poll()
    E('v_lshrrev_b32 v2, 5, v1\nv_bfe_u32 v3, v1, 2, 2\nv_lshl_add_u32 v3, v2, 3, v3\nv_mul_u32_u24 v3, 192, v3')
    E('v_bfe_u32 v4, v1, 4, 1\nv_lshlrev_b32 v4, 5, v4\nv_and_b32 v5, 3, v1\nv_lshl_add_u32 v4, v5, 3, v4\nv_add_u32 v3, v3, v4')
    a.e('s_mul_i32 s34, s47, 12288\nv_add_u32 v3, s34, v3')
    E('v_and_b32 v4, 31, v1\nv_bfe_u32 v5, v1, 1, 3\nv_xor_b32 v5, v5, v2\nv_lshlrev_b32 v5, 4, v5')
    E('v_lshlrev_b32 v38, 7, v4\nv_add_u32 v38, s28, v38')
    for j in range(4):
        a.e(f's_add_u32 s34, s38, {j}\ns_and_b32 s34, s34, 3')
        a.e(f's_mul_i32 s35, s34, 3072\nv_add_u32 v{19+j}, s35, v3')
        a.e(f's_lshl_b32 s35, s34, 5\nv_xor_b32 v39, s35, v5\nv_add_u32 v{23+j}, v38, v39')
    a.e('s_movk_i32 s37, 2752')
    for t in range(3): E(f'v_mad_u32_u24 v{16+t}, v{44+t}, s37, v{47+t}')
    a.e('s_mul_i32 s34, s38, 44032\ns_add_u32 s26, s26, s34')
    E('v_and_b32 v3, 3, v1\nv_bfe_u32 v38, v1, 2, 1\nv_bfe_u32 v5, v1, 4, 1\nv_xor_b32 v38, v38, v5\nv_or_b32 v3, v3, v38')
    a.e('v_cmp_eq_u32 vcc, 0, v3\nv_mov_b32 v5, 0x3f803f80\ns_nop 0\nv_cndmask_b32 v40, 0, v5, vcc')
    E('v_mov_b32 v41, v40\nv_mov_b32 v42, v40\nv_mov_b32 v43, v40')
    a.e(f's_mul_i32 s34, s20, 384\ns_add_u32 s35, s34, {CS_OFF}')
    a.e('v_lshl_add_u32 v27, v4, 2, s35')
    a.e(f's_mul_i32 s34, s47, 192\ns_add_u32 s34, s34, {CS_OFF}\nv_lshl_add_u32 v28, v1, 2, s34')
    a.e(f's_mul_i32 s34, s20, 192\ns_add_u32 s35, s34, {CSP}\nv_lshl_add_u32 v29, v1, 2, s35')
    a.e('v_lshlrev_b32 v2, 4, v2\nv_add_u32 v30, s35, v2')
    E('v_lshl_add_u32 v37, v4, 5, v2')
    srd(a, 12, P_W1, 512 * 1376 * 2)
    srd(a, 16, P_WS, WS_SIZE)
    touches = []
    if P['touch']:
        def tw1():
            a.e('s_mul_i32 s50, s51, 688')
            a.vmem('buffer_load_dwordx4 v[120:123], v8, s[12:15], s50 offen', 'tch')
        def tw2():
            srd(a, 92, P_W2, 1376 * 512 * 2)
            a.e('s_mul_i32 s50, s51, 688')
            a.vmem('buffer_load_dwordx4 v[120:123], v8, s[92:95], s50 offen', 'tch')
        def two():
            srd(a, 92, P_WO, 512 * 512 * 2)
            a.e('s_lshl_b32 s50, s51, 8')
            a.vmem('buffer_load_dwordx4 v[120:123], v8, s[92:95], s50 offen', 'tch')
        touches = [tw1, tw2, two]
    if 'nopf' not in tog:
        a.e('s_getpc_b64 s[98:99]')
        a.label('Lpf_base')
        a.e('s_lshl_b32 s34, s33, 3\ns_add_u32 s34, s34, s20\ns_min_u32 s34, s34, (Lcode_end-Lpf_base)/1024-1\ns_lshl_b32 s34, s34, 10')
        a.e('s_add_u32 s98, s98, s34\ns_addc_u32 s99, s99, 0')
        a.vmem('global_load_dwordx4 v[120:123], v8, s[98:99]', 'pf')
    a.flush_early()
    stamp('pro2')

    WF = [64, 76]; ACC = [64, 112]; CSA = [44, 48, 52]
    NMEAN, RSTD, RS2 = 34, 36, 38
    TT = 160 - 24 - 0
    epi = Q()
    def read_w(n, i):
        st, j = divmod(n, 4)
        base = (st % 3) * WSL
        for rd in range(2):
            r = WF[n & 1] + 4 * i + 2 * rd
            a.lds(f'ds_read_b64_tr_b16 a[{r}:{r+1}], v{19+j} offset:{base + rd*768 + 64*i}', ('rw', n, i))
    def read_xa(n):
        st, j = divmod(n, 4)
        a.lds(f'ds_read_b128 a[{4*n}:{4*n+3}], v{23+j} offset:{(st%2)*XSL}', ('rxa', n))
    def cs_flush(part):
        for i in range(3):
            a.lds(f'ds_write_b32 v27, v{CSA[i]} offset:{i*128}', ('csw', part))
    def q_cs_stage2(part):
        TC = list(range(56, 64)) if part == 0 else [13, 14, 15, 16, 17, 18, 31, 32]
        def rd():
            for w in range(8): a.lds(f'ds_read_b32 v{TC[w]}, v28 offset:{w*384}', ('cs2', part))
        epi.add(rd, 8)
        epi.add(lambda: a.lg_wait(('cs2', part)), 1)
        for (x, y) in [(0, 1), (2, 3), (4, 5), (6, 7), (0, 2), (4, 6), (0, 4)]: epi.add(f'v_add_f32 v{TC[x]}, v{TC[x]}, v{TC[y]}')
        def w():
            a.e('s_mov_b32 exec_hi, 0xffff')
            a.lds(f'ds_write_b32 v29, v{TC[0]}', ('cs3', part))
            a.e('s_mov_b32 exec_hi, -1')
        epi.add(w, 3)

    def q_stats():
        epi.add(lambda: a.vm_wait('srow'))
        T = 124
        for q in range(4):
            epi.add(f'v_lshlrev_b32 v{T+2*q}, 16, v{112+q}'); epi.add(f'v_and_b32 v{T+2*q+1}, 0xffff0000, v{112+q}')
        S, Qq = 160, 161
        epi.add(f'v_add_f32 v{S}, v{T}, v{T+1}'); epi.add(f'v_mul_f32 v{Qq}, v{T}, v{T}')
        for q in range(1, 8):
            if q >= 2: epi.add(f'v_add_f32 v{S}, v{S}, v{T+q}')
            epi.add(f'v_fma_f32 v{Qq}, v{T+q}, v{T+q}, v{Qq}')
        for ctl in ['row_shr:1 row_mask:0xf bank_mask:0xf bound_ctrl:0', 'row_shr:2 row_mask:0xf bank_mask:0xf bound_ctrl:0',
                    'row_shr:4 row_mask:0xf bank_mask:0xf bound_ctrl:0', 'row_shr:8 row_mask:0xf bank_mask:0xf bound_ctrl:0',
                    'row_bcast:15 row_mask:0xa bank_mask:0xf', 'row_bcast:31 row_mask:0xc bank_mask:0xf']:
            epi.add(f's_nop 1\nv_add_f32_dpp v{S}, v{S}, v{S} {ctl}\nv_add_f32_dpp v{Qq}, v{Qq}, v{Qq} {ctl}', 4)
        for t in [f'v_mul_f32 v{S}, 0x3b000000, v{S}', f'v_mul_f32 v{Qq}, 0x3b000000, v{Qq}', f'v_fma_f32 v{Qq}, -v{S}, v{S}, v{Qq}',
                  f'v_max_f32 v{Qq}, 0, v{Qq}', f'v_cvt_pk_bf16_f32 v{S}, v{S}, v{S}', f'v_cvt_pk_bf16_f32 v{Qq}, v{Qq}, v{Qq}',
                  f'v_and_b32 v{Qq}, 0xffff0000, v{Qq}', f'v_add_f32 v{Qq}, {f2u(1e-5):#x}, v{Qq}', f'v_cvt_pk_bf16_f32 v{Qq}, v{Qq}, v{Qq}',
                  f'v_and_b32 v{Qq}, 0xffff0000, v{Qq}', f'v_sqrt_f32 v{Qq}, v{Qq}\nv_and_b32 v{S}, 0xffff, v{S}',
                  f'v_cvt_pk_bf16_f32 v{Qq}, v{Qq}, v{Qq}', f'v_and_b32 v{Qq}, 0xffff0000, v{Qq}', f'v_or_b32 v162, v{S}, v{Qq}']:
            epi.add(t)
    def q_stats2():
        lab = a.newlabel('Ln')
        def nchk():
            a.vm_wait('npoll')
            a.e(f'v_readfirstlane_b32 s{S_NONCE}, v6')
            a.e(f's_nop 3\ns_cmp_eq_u32 s{S_NONCE}, 0\ns_cbranch_scc1 {lab}_stub')
            a.label(lab)
        def nstub():
            a.label(lab + '_stub')
            a.e('s_mov_b32 s58, 0')
            a.label(lab + '_loop')
            a.e('s_sleep 2\nbuffer_load_dword v6, v7, s[88:91], 0 offen sc0 sc1\ns_waitcnt vmcnt(0)')
            a.e(f'v_readfirstlane_b32 s{S_NONCE}, v6')
            a.e(f's_add_u32 s58, s58, 1\ns_cmp_gt_u32 s58, 0x40000\ns_cbranch_scc1 {lab}')
            a.e(f's_cmp_eq_u32 s{S_NONCE}, 0\ns_cbranch_scc1 {lab}_loop\ns_branch {lab}')
        a.stub_fns.append(nstub)
        a.vmem('buffer_load_dword v6, v7, s[88:91], 0 offen sc0 sc1', 'npoll')
        epi.add('s_nop 0', P.get('ndelay', 24))
        epi.add(nchk, 5)
        def fin():
            a.e(f'v_mov_b32 v163, s{S_NONCE}\nv_cmp_eq_u32 vcc, 63, v1\nv_mov_b32 v2, {OOB:#x}\nv_mov_b32 v3, 0\n'
                f'v_cndmask_b32 v2, v2, v3, vcc\ns_lshl_b32 s34, s30, 3\ns_add_u32 s34, s34, {WS_S}')
            a.vmem(f'buffer_store_dwordx2 v[162:163], v2, s[16:19], s34 offen {STF}', 'strec')
        epi.add(fin, 8)
    def q_params():
        epi.add('s_lshl_b32 s39, s21, 2\ns_add_u32 s39, s39, s38', 2)
        for pp in range(3):
            epi.add(f's_mul_i32 s34, s22, 6\ns_mul_i32 s35, s47, 3\ns_add_u32 s34, s34, s35\ns_add_u32 s34, s34, {pp}\ns_lshr_b32 s35, s34, 5\ns_and_b32 s34, s34, 31\n'
                    f's_lshl_b32 s34, s34, 16\ns_lshl_b32 s{40+pp}, s35, 21\ns_add_u32 s{40+pp}, s{40+pp}, s34\ns_lshl_b32 s34, s39, 10\ns_add_u32 s{40+pp}, s{40+pp}, s34\n'
                    f's_cmp_eq_u32 s35, 0\ns_cselect_b32 s{44+pp}, {QSCALE}, 1.0\ns_cmp_eq_u32 s35, 2\ns_cselect_b64 vcc, -1, 0\n'
                    f'v_cndmask_b32 v{31+pp}, v8, v37, vcc', 16)
        epi.add('s_mul_i32 s43, s22, 6\ns_mul_i32 s35, s47, 3\ns_add_u32 s43, s43, s35', 3)
    def q_roles():
        epi.add('s_lshl_b32 s52, s32, 2\ns_and_b32 s34, s33, 3\ns_add_u32 s52, s52, s34\ns_lshr_b32 s53, s33, 2', 4)
        epi.add('s_lshl_b32 s80, s32, 2\ns_lshr_b32 s34, s33, 3\ns_add_u32 s80, s80, s34\ns_and_b32 s81, s33, 7', 4)
        epi.add('s_and_b32 s82, s20, 1\ns_lshr_b32 s83, s20, 1\ns_lshl_b32 s84, s80, 1\ns_add_u32 s84, s84, s82', 4)
        epi.add(f's_mul_i32 s85, s84, 86\ns_mul_i32 s34, s83, 22\ns_add_u32 s85, s85, s34\ns_lshl_b32 s85, s85, 10\ns_add_u32 s85, s85, {WS_H}', 5)
        epi.add(f's_lshl_b32 s86, s84, 5\ns_lshl_b32 s34, s83, 3\ns_add_u32 s86, s86, s34\ns_lshl_b32 s86, s86, 10\ns_add_u32 s86, s86, {WS_O}', 5)
        epi.add('s_mul_i32 s87, s83, 22\ns_add_u32 s87, s87, s82\ns_lshl_b32 s87, s87, 14\ns_lshl_b32 s34, s81, 7\ns_add_u32 s87, s87, s34', 5)
        epi.add('s_lshl_b32 s96, s83, 3\ns_add_u32 s96, s96, s82\ns_lshl_b32 s96, s96, 14\ns_lshl_b32 s34, s81, 7\ns_add_u32 s96, s96, s34', 5)
        epi.add('s_lshl_b32 s97, s20, 11', 1)
    VEXW, VEXR = 160, 161
    def exch_addr(part):
        if part == 0:
            a.e(f's_mul_i32 s34, s20, 6144\ns_add_u32 s34, s34, {XRING}\nv_add_u32 v{VEXW}, s34, v8')
            a.e(f's_xor_b32 s34, s20, 4\ns_mul_i32 s34, s34, 6144\ns_add_u32 s34, s34, {XRING}\nv_add_u32 v{VEXR}, s34, v8')
        else:
            a.e(f's_mul_i32 s34, s38, 6144\ns_mul_i32 s35, s47, 49152\ns_add_u32 s35, s35, s34\nv_add_u32 v{VEXW}, s35, v8')
            a.e(f's_xor_b32 s35, s47, 1\ns_mul_i32 s35, s35, 49152\ns_add_u32 s35, s35, s34\nv_add_u32 v{VEXR}, s35, v8')
    def exch_write(part):
        acc = ACC[part]
        l0 = a.newlabel('Lx'); l1 = a.newlabel('Lx')
        a.e(f's_cmp_eq_u32 s47, 0\ns_cbranch_scc0 {l0}')
        for q in range(6): a.e(f'ds_write_b128 v{VEXW}, v[{acc+24+4*q}:{acc+27+4*q}] offset:{q*1024}')
        a.e(f's_branch {l1}')
        a.label(l0)
        for q in range(6): a.e(f'ds_write_b128 v{VEXW}, v[{acc+4*q}:{acc+3+4*q}] offset:{q*1024}')
        a.label(l1)
        for q in range(6): a.lg.append(('exw', part))
        a.lg_ever.add(('exw', part))
    def exch_read(part):
        acc = ACC[part]
        l0 = a.newlabel('Lx'); l1 = a.newlabel('Lx')
        a.e(f's_cmp_eq_u32 s47, 0\ns_cbranch_scc0 {l0}')
        for q in range(6): a.e(f'ds_read_b128 v[{acc+24+4*q}:{acc+27+4*q}], v{VEXR} offset:{q*1024}')
        a.e(f's_branch {l1}')
        a.label(l0)
        for q in range(6): a.e(f'ds_read_b128 v[{acc+4*q}:{acc+3+4*q}], v{VEXR} offset:{q*1024}')
        a.label(l1)
        for q in range(6): a.lg.append(('exr', part))
        a.lg_ever.add(('exr', part))
    def epi_math(part):
        acc = ACC[part]
        a.lg_wait(('exr', part))
        for r in range(0, 24, 2): a.e(f'v_pk_add_f32 v[{acc+r}:{acc+r+1}], v[{acc+r}:{acc+r+1}], v[{acc+24+r}:{acc+25+r}]')
        CSV = acc + 24
        for pp in range(3):
            for g in range(2): a.lds(f'ds_read_b128 v[{CSV+8*pp+4*g}:{CSV+8*pp+4*g+3}], v30 offset:{pp*64 + g*32}', ('cs', part, pp))
        for pp in range(3):
            T_ = acc + 8 * pp; C_ = CSV + 8 * pp
            if part == 0: a.e(f'v_mul_f32 v{RS2}, s{44+pp}, v{RSTD}')
            rs = RS2 if part == 0 else RSTD
            a.lg_wait(('cs', part, pp))
            for q in range(4): a.e(f'v_pk_fma_f32 v[{T_+2*q}:{T_+2*q+1}], v[{C_+2*q}:{C_+2*q+1}], v[{NMEAN}:{NMEAN+1}], v[{T_+2*q}:{T_+2*q+1}] op_sel_hi:[1,0,1]')
            for q in range(4): a.e(f'v_pk_mul_f32 v[{T_+2*q}:{T_+2*q+1}], v[{T_+2*q}:{T_+2*q+1}], v[{rs}:{rs+1}] op_sel_hi:[1,0]')
            for q in range(4): a.e(f'v_cvt_pk_bf16_f32 v{C_+q}, v{T_+2*q}, v{T_+2*q+1}')
            if part == 1:
                for q in range(4): a.e(f'v_pk_max_i16 v{C_+q}, v{C_+q}, 0')
                a.e(f's_add_u32 s34, s43, {pp}\ns_mul_i32 s35, s39, 86\ns_add_u32 s35, s35, s34\ns_lshl_b32 s35, s35, 10\ns_add_u32 s35, s35, {WS_H}\n'
                    f's_cmp_ge_u32 s34, 86\ns_cselect_b32 s35, {OOB - 65536:#x}, s35')
                a.vmem(f'buffer_store_dwordx4 v[{C_}:{C_+3}], v8, s[16:19], s35 offen {STF}', 'st1')
            else:
                a.vmem(f'buffer_store_dwordx4 v[{C_}:{C_+3}], v{31+pp}, s[16:19], s{40+pp} offen {STF}', 'st0')

    MD, ME, CP = 64, 80, 96
    QF = 56
    KFR = [12, 16, 20]
    SB = [112, 128, 144]
    OA = 144
    PB = [24, 32]
    VT = [[40, 44], [160, 164]]
    MM = 52; VM1024 = 60; VFLAG = 55
    VBIG, VZ, VB = 9, 11, 10
    def q_attn_prep():
        epi.add('v_and_b32 v2, 31, v1\nv_lshrrev_b32 v3, 5, v1\nv_lshlrev_b32 v3, 2, v3\nv_sub_u32 v4, v2, v3', 4)
        epi.add(f'v_mov_b32 v{VBIG}, {BIG:#x}\nv_mov_b32 v5, 0', 2)
        for r in range(0, 16, 2):
            c0 = 8 * (r >> 2) + (r & 3); c1 = c0 + 1
            epi.add(f'v_cmp_le_i32 s[56:57], {c0}, v4\nv_cmp_le_i32 s[58:59], {c1}, v4\ns_nop 0\n'
                    f'v_cndmask_b32 v{MD+r}, v{VBIG}, v5, s[56:57]\nv_cndmask_b32 v{MD+r+1}, v{VBIG}, v5, s[58:59]', 5)
        for r in range(16): epi.add(f'v_sub_f32 v{ME+r}, v{VBIG}, v{MD+r}')
        lab = a.newlabel('Le')
        def rz():
            a.e(f's_cmp_eq_u32 s53, 0\ns_cbranch_scc1 {lab}_stub')
            a.label(lab)
            def stub():
                a.label(lab + '_stub')
                for r in range(16): a.e(f'v_mov_b32 v{ME+r}, v{VBIG}')
                a.e(f's_branch {lab}')
            a.stub_fns.append(stub)
        epi.add(rz, 2)
        epi.add(f's_cmp_eq_u32 s53, 0\ns_cselect_b32 s34, {BIG:#x}, 0\nv_mov_b32 v{VZ}, s34', 3)
        for r in range(16): epi.add(f'v_mov_b32 v{CP+r}, v{VZ}')
        epi.add(f's_lshl_b32 s34, s20, 10\ns_add_u32 s35, s34, {KOFF}\nv_add_u32 v6, s35, v8', 3)
        epi.add('v_bfe_u32 v2, v1, 2, 2\nv_lshrrev_b32 v3, 5, v1\nv_lshl_add_u32 v2, v3, 2, v2\nv_lshlrev_b32 v2, 5, v2', 4)
        epi.add('v_and_b32 v3, 1, v1\nv_lshl_add_u32 v2, v3, 4, v2\nv_bfe_u32 v3, v1, 1, 1\nv_lshl_add_u32 v2, v3, 3, v2\n'
                f's_lshl_b32 s34, s20, 10\ns_add_u32 s35, s34, {VOFF}\nv_add_u32 v7, s35, v2', 7)
        epi.add(f'v_and_b32 v3, 15, v1\nv_lshlrev_b32 v3, 3, v3\nv_add_u32 v3, {ONES}, v3\nv_bfe_u32 v2, v1, 4, 1\nv_cmp_eq_u32 vcc, 1, v2\n'
                f'v_mov_b32 v2, 0x400\nv_mov_b32 v4, 0\nv_cndmask_b32 v7, v7, v3, vcc\nv_cndmask_b32 v{VM1024}, v2, v4, vcc', 9)
        epi.add('s_sub_u32 s88, 8, s20\ns_cmp_eq_u32 s53, 0\ns_cselect_b32 s88, s88, 0', 3)
        for t in range(2):
            epi.add(f's_lshl_b32 s34, s53, 3\ns_lshl_b32 s35, s20, 1\ns_add_u32 s34, s34, s35\ns_add_i32 s34, s34, {t-8}\ns_max_i32 s34, s34, 0\n'
                    f's_lshl_b32 s34, s34, 10\ns_lshl_b32 s35, s52, 16\ns_add_u32 s34, s34, s35\ns_add_u32 s{40+t}, s34, {WS_K}', 9)
        epi.add('s_lshl_b32 s34, s53, 3\ns_add_u32 s99, s34, s20\ns_lshl_b32 s34, s99, 10\ns_lshl_b32 s35, s52, 16\ns_add_u32 s45, s34, s35', 5)
        epi.add('s_lshl_b32 s46, s20, 11\ns_mov_b32 s100, s52\ns_mov_b32 s101, s53', 3)

    def slot_of(s): return s % 9
    def b_stage_ops(s):
        ops = []
        for hf in range(2):
            def f(hf=hf):
                m0v = BSLOT[slot_of(s)] + hf * 1024
                a.e(f's_add_u32 m0, s97, {m0v}'); m0state[0] = None
                if s < 11:
                    a.e(f's_add_u32 s98, s87, {(2*s*16 + hf*8)*1024}')
                    a.vmem(f'buffer_load_dwordx4 v{VB}, s[8:11], s98 offen lds', ('b', s))
                else:
                    a.e(f's_add_u32 s98, s96, {((2*s-22)*16 + hf*8)*1024}')
                    a.vmem(f'buffer_load_dwordx4 v{VB}, s[12:15], s98 offen lds', ('b', s))
            ops.append((('b', s), f))
        return ops

    if P.get('stats_pro', 1):
        q_stats()
        epi.drain(a)
    for _ in range(P.get('pre_x1', 4)): vs._emit()
    vs.force([('x', 0), ('w', 0)])
    a.vm_wait([('x', 0), ('w', 0)])
    a.e('s_barrier')
    stamp('bar0')
    for n in range(4): read_xa(n)
    read_w(0, 0); read_w(0, 1); read_w(0, 2)
    if not P.get('stats_pro', 1): q_stats()
    q_stats2(); q_params(); q_roles()
    ld1 = f'buffer_load_dword v39, v12, s[16:19], s50 offen {STF}'
    for n in range(32):
        st, j = divmod(n, 4)
        part = st // 4
        stamp(f'n{n}', True)
        if j == 1 and st + 2 < 4:
            for tg, f in dma_x_ops(st + 2): vs.add(tg, f, XC, dl=4*(st+2))
        if n in (1, 5, 9) and touches: touches.pop(0)()
        if n == 8: epi.drain(a)
        if n == P.get('n_srec', 9):
            a.e(f'v_and_b32 v2, 31, v1\nv_lshlrev_b32 v38, 3, v2\ns_lshl_b32 s50, s39, 8\ns_add_u32 s50, s50, {WS_S}')
            a.vmem(f'buffer_load_dwordx2 v[162:163], v38, s[16:19], s50 offen {STF}', 'srec')
        if n == 14:
            a.vm_wait('srec')
            poll_check(a, 163, None, f'buffer_load_dwordx2 v[162:163], v38, s[16:19], s50 offen {STF}')
            a.e(f'v_lshlrev_b32 v{NMEAN}, 16, v162\nv_and_b32 v{RSTD}, 0xffff0000, v162')
            a.e(f'v_rcp_f32 v{RSTD}, v{RSTD}\nv_xor_b32 v{NMEAN}, 0x80000000, v{NMEAN}')
            exch_addr(0)
        if n == 17:
            epi.drain(a)
            stamp('x0a', True)
            exch_write(0)
            a.lg_wait(('exw', 0))
            stamp('x0b', True)
            a.e('s_barrier')
            stamp('x0c', True)
            exch_read(0)
            epi_math(0)
            stamp('st0iss', True)
            a.e(f's_lshl_b32 s34, s53, 1\ns_sub_u32 s34, s34, 2')
            a.e('v_lshrrev_b32 v2, 4, v1\nv_add_u32 v2, s34, v2\nv_cmp_le_i32 s[54:55], 0, v2\nv_max_i32 v2, 0, v2')
            a.e('v_and_b32 v3, 15, v1\nv_lshlrev_b32 v2, 6, v2\nv_lshl_add_u32 v12, v3, 2, v2')
            a.e('s_mul_i32 s34, s52, 43691\ns_lshr_b32 s34, s34, 18')
            a.e('s_add_u32 s35, s52, 32\ns_mul_i32 s35, s35, 43691\ns_lshr_b32 s35, s35, 18')
            a.e('s_add_u32 s36, s52, 64\ns_mul_i32 s36, s36, 43691\ns_lshr_b32 s36, s36, 18')
            a.e('v_cmp_eq_u32 s[56:57], s34, v3\nv_cmp_eq_u32 s[58:59], s35, v3\nv_cmp_eq_u32 vcc, s36, v3')
            a.e('s_nop 2\ns_or_b64 s[56:57], s[56:57], s[58:59]\ns_or_b64 s[56:57], s[56:57], vcc\ns_and_b64 s[54:55], s[54:55], s[56:57]')
            a.e(f's_mov_b32 s50, {WS_F}\ns_cmp_eq_u32 s20, 0\ns_cselect_b32 s50, s50, {OOB - 4096:#x}')
            q_attn_prep()
        if n == P.get('n_b1', 21):
            srd(a, 8, P_W2, 1376 * 512 * 2)
            a.e('v_lshrrev_b32 v2, 3, v1\nv_lshlrev_b32 v2, 10, v2')
            a.e('v_bfe_u32 v3, v1, 4, 1\nv_lshlrev_b32 v3, 2, v3\nv_and_b32 v38, 7, v1\nv_xor_b32 v3, v3, v38')
            a.e(f'v_lshl_add_u32 v{VB}, v3, 4, v2')
            if 'nob1' not in tog:
                for s in range(3):
                    for tg, f in b_stage_ops(s): vs.add(tg, f, P.get('bc1', 60), dl=1000 + 2*s - 2)
        if n == 28: exch_addr(1)
        if n == P.get('n_ld1', 30): a.vmem(ld1, 'p1')
        if j == 3:
            need = []
            if st < 7: need = [('w', st + 1)] + ([('x', st + 1)] if st + 1 < 4 else [])
            vs.force(need)
            if st == P.get('f1st', 5): need = need + ['st0']
            if need: a.vm_wait(need)
            a.lg_drain()
            a.e('s_barrier')
            if st in (1, 3, 5): stamp(f's{st}')
            else: stamp(f's{st}', True)
            if st + 3 < 8:
                for tg, f in dma_w_ops(st + 3): vs.add(tg, f, WC, dl=4*(st+3))
            if st == P.get('f1st', 5):
                a.e(f's_lshl_b32 s34, s21, 6\ns_lshl_b32 s35, s22, 2\ns_add_u32 s34, s34, s35\ns_add_u32 s34, s34, {WS_F}')
                a.e(f'v_cmp_eq_u32 vcc, 0, v0\nv_mov_b32 v2, {OOB:#x}\nv_mov_b32 v3, 0\nv_mov_b32 v39, s{S_NONCE}')
                a.e('v_cndmask_b32 v38, v2, v3, vcc')
                a.vmem(f'buffer_store_dword v39, v38, s[16:19], s34 offen {STF}', 'f1')
            if st == 3: q_cs_stage2(0)
            if st == 7: q_cs_stage2(1)
            if st + 1 < 4:
                for jj in range(4): epi.q.appendleft((1, (lambda nn=4*(st+1)+3-jj: read_xa(nn))))
        for i in range(3):
            acc = ACC[part] + 16 * i
            w = WF[n & 1] + 4 * i
            cin = '0' if (n % 16) == 0 else f'v[{acc}:{acc+15}]'
            a.lg_wait([('rw', n, i)] + ([('rxa', n)] if (i == 0 and st < 4) else []))
            a.e(f'v_mfma_f32_32x32x16_bf16 v[{acc}:{acc+15}], a[{w}:{w+3}], a[{4*(n%16)}:{4*(n%16)+3}], {cin}')
            budget = P['epi_budget']
            if n + 1 < 32: read_w(n + 1, i)
            if j == 0:
                cs = CSA[i]
                cc = '0' if st % 4 == 0 else f'v[{cs}:{cs+3}]'
                a.e(f'v_mfma_f32_16x16x32_bf16 v[{cs}:{cs+3}], v[40:43], a[{w}:{w+3}], {cc}')
            vs.poll()
            epi.run(a, budget)
        if j == 1 and st in (3, 7): cs_flush(part)
    epi.drain(a)
    stamp('p1end')

    a.e('s_nop 7')
    exch_write(1)
    a.vm_wait('p1')
    poll_check(a, 39, 's[54:55]', ld1, wave0=True)
    a.lg_wait(('exw', 1))
    a.e('s_barrier')
    stamp('f1ok')
    m0state[0] = None
    for t in range(2):
        a.e(f's_add_u32 m0, s46, {KOFF + t*1024}\ns_nop 0')
        a.vmem(f'buffer_load_dwordx4 v8, s[16:19], s{40+t} offen {STF} lds', 'k')
    a.vmem(f'buffer_load_dwordx4 v[{QF}:{QF+3}], v8, s[16:19], s45 offen {STF}', 'q')
    for t in range(2):
        a.e(f's_add_u32 m0, s46, {VOFF + t*1024}\ns_add_u32 s34, s{40+t}, {WS_V - WS_K}')
        a.vmem(f'buffer_load_dwordx4 v8, s[16:19], s34 offen {STF} lds', 'v')
    exch_read(1)
    a.e(f'v_mov_b32 v2, 0x3f803f80\nv_and_b32 v3, 255, v0\nv_lshlrev_b32 v3, 2, v3\nv_add_u32 v3, {ONES}, v3')
    a.lds('ds_write_b32 v3, v2', 'ones')
    srd(a, 12, P_WO, 512 * 512 * 2)
    epi_math(1)
    stamp('hepi')
    a.e(f'v_mov_b32 v{MM}, v{VBIG}')
    a.e(f'v_cmp_eq_u32 vcc, 0, v1\nv_mov_b32 v2, {OOB:#x}\nv_mov_b32 v3, 0\nv_mov_b32 v4, s{S_NONCE}')
    a.e(f'v_cndmask_b32 v{VFLAG}, v2, v3, vcc')
    a.e(f's_lshl_b32 s51, s39, 7\ns_lshl_b32 s34, s22, 3\ns_add_u32 s51, s51, s34\ns_lshl_b32 s34, s47, 2\ns_add_u32 s51, s51, s34\ns_add_u32 s51, s51, {WS_F2}')
    a.e(f's_lshl_b32 s34, s84, 7\ns_add_u32 s89, s34, {WS_F2}')
    a.e('v_and_b32 v2, 31, v1\nv_lshlrev_b32 v5, 2, v2')
    ld2 = f'buffer_load_dword v3, v5, s[16:19], s89 offen {STF}'
    a.vm_wait(['k', 'q'])
    a.lg_drain()
    a.e('s_barrier')
    stamp('kvbar')
    for s_ in range(3 if 'nob1' not in tog else 0, 7):
        for tg, f in b_stage_ops(s_): vs.add(tg, f, P.get('paceT', 50), dl=1000 + 2*s_ - 2)
    kreads = [0]
    def read_k(j, tag):
        r = KFR[kreads[0] % 3]; kreads[0] += 1
        a.lds(f'ds_read_b128 v[{r}:{r+3}], v6 offset:{j*1024}', (tag, j))
        return r
    def thresh(j, writes):
        lab = a.newlabel('Lt')
        a.e(f's_cmp_eq_u32 s88, {j}\ns_cbranch_scc1 {lab}_stub')
        a.label(lab)
        def stub():
            a.label(lab + '_stub')
            a.e('s_nop 7')
            for w in writes: a.e(w)
            a.e(f's_nop 1\ns_branch {lab}')
        a.stub_fns.append(stub)
    kreg = {}
    kreg[0] = read_k(0, 'k1'); kreg[1] = read_k(1, 'k1')
    LOOK = 2
    for idx in range(9 + LOOK):
        if idx < 9:
            j = idx
            cm = MD if j == 8 else (ME if j == 0 else CP)
            if j >= 1: thresh(j, [f'v_mov_b32 v{CP+r}, 0' for r in range(16)]) if j < 9 else None
            a.lg_wait(('k1', j))
            sb = SB[j % 3]
            a.e(f'v_mfma_f32_32x32x16_bf16 v[{sb}:{sb+15}], v[{kreg[j]}:{kreg[j]+3}], v[{QF}:{QF+3}], v[{cm}:{cm+15}]')
            if j + 2 < 9: kreg[j + 2] = read_k(j + 2, 'k1')
        if idx >= LOOK:
            if idx >= 9 or idx == LOOK: a.e('s_nop 7\ns_nop 3')
            sb = SB[(idx - LOOK) % 3]
            for q in range(8): a.e(f'v_max3_f32 v{MM}, v{sb+2*q}, v{sb+2*q+1}, v{MM}')
        if 'nop1' not in tog: vs.poll()
        stamp(f'a{idx}', True)
    stamp('pass1')
    def f2store():
        a.vm_wait('st1')
        a.e(f'v_mov_b32 v4, s{S_NONCE}')
        a.vmem(f'buffer_store_dword v4, v{VFLAG}, s[16:19], s51 offen {STF}', 'f2')
    if P.get('f2idx', -1) == -1: f2store()
    kreg = {}
    kreg[0] = read_k(0, 'k2'); kreg[1] = read_k(1, 'k2')
    a.e(f'v_mov_b32 v2, v{MM}\ns_nop 1\nv_permlane32_swap_b32 v{MM}, v2\nv_max_f32 v{MM}, v{MM}, v2\nv_sub_f32 v{MM}, 0, v{MM}')
    a.e(f's_cmp_eq_u32 s101, 0\ns_cselect_b64 vcc, -1, 0\nv_cndmask_b32 v2, v{MM}, v{VBIG}, vcc')
    for r in range(16): a.e(f'v_mov_b32 v{CP+r}, v2')
    for r in range(16): a.e(f'v_add_f32 v{ME+r}, v{ME+r}, v{MM}')
    vs.poll()
    for r in range(16): a.e(f'v_add_f32 v{MD+r}, v{MD+r}, v{MM}')
    a.vm_wait('v')
    a.e('s_barrier')
    def h_ops():
        ops = []
        for t in range(22):
            def f(t=t):
                if t >= 20:
                    a.e(f's_mul_i32 s34, s83, 22\ns_add_u32 s34, s34, {t}\ns_min_u32 s34, s34, 85\ns_mul_i32 s35, s84, 86\ns_add_u32 s34, s34, s35\ns_lshl_b32 s34, s34, 10\ns_add_u32 s34, s34, {WS_H}')
                    a.vmem(f'buffer_load_dwordx4 a[{4*t}:{4*t+3}], v8, s[16:19], s34 offen {STF}', ('a', t))
                else:
                    if t % 4 == 0 and t: a.e('s_add_u32 s85, s85, 4096')
                    a.vmem(f'buffer_load_dwordx4 a[{4*t}:{4*t+3}], v8, s[16:19], s85 offen offset:{(t%4)*1024} {STF}', ('a', t))
            ops.append((('a', t), f))
        return ops
    def f2check():
        a.vm_wait('p2')
        poll_check(a, 3, None, ld2)
        for k_, (tg, f) in enumerate(h_ops()): vs.add(tg, f, P['paceA'], dl=1000 + k_)
    HPOLL = P.get('hpoll', 3); F2IDX = P.get('f2idx', -1)
    stamp('tuples')
    def v_reads(j):
        a.e(f'v_mad_u32_u24 v2, v{VM1024}, {j}, v7' if j else 'v_mov_b32 v2, v7')
        vt = VT[j & 1]
        for mf in range(2):
            for rd in range(2):
                a.lds(f'ds_read_b64_tr_b16 v[{vt[mf]+2*rd}:{vt[mf]+2*rd+1}], v2 offset:{mf*512 + rd*256}', ('v', j))
    def s_mfma(j):
        if j >= 1: thresh(j, [f'v_mov_b32 v{CP+r}, v{MM}' for r in range(16)])
        ct = ME if j == 0 else (MD if j == 8 else CP)
        sb = SB[j % 2]
        a.lg_wait(('k2', j))
        a.e(f'v_mfma_f32_32x32x16_bf16 v[{sb}:{sb+15}], v[{kreg[j]}:{kreg[j]+3}], v[{QF}:{QF+3}], v[{ct}:{ct+15}]')
        if j + 2 < 9: kreg[j + 2] = read_k(j + 2, 'k2')
    def pv(j, mf):
        pb = PB[j % 2]; vt = VT[j & 1]
        if mf == 0: a.lg_wait(('v', j))
        cin = '0' if (j == 0 and mf == 0) else f'v[{OA}:{OA+15}]'
        a.e(f'v_mfma_f32_32x32x16_bf16 v[{OA}:{OA+15}], v[{vt[mf]}:{vt[mf]+3}], v[{pb+4*mf}:{pb+4*mf+3}], {cin}')
    v_reads(0)
    s_mfma(0)
    a.e('s_nop 7\ns_nop 3')
    for j in range(9):
        sb = SB[j % 2]; pb = PB[j % 2]
        if j == F2IDX: f2store()
        if j == HPOLL - 2: a.vmem(ld2, 'p2')
        if j == HPOLL: f2check()
        if j + 1 < 9: s_mfma(j + 1)
        for q in range(4): a.e(f'v_exp_f32 v{sb+q}, v{sb+q}')
        if j >= 1: pv(j - 1, 0)
        for q in range(4, 8): a.e(f'v_exp_f32 v{sb+q}, v{sb+q}')
        vs.poll()
        if j >= 1: pv(j - 1, 1)
        if j + 1 < 9: v_reads(j + 1)
        for q in range(8, 16):
            a.e(f'v_exp_f32 v{sb+q}, v{sb+q}')
            if q in (11, 15): vs.poll()
        for q in range(8): a.e(f'v_cvt_pk_bf16_f32 v{pb+q}, v{sb+2*q}, v{sb+2*q+1}')
    a.e('s_nop 1')
    pv(8, 0); pv(8, 1)
    stamp('pass2')
    a.e(f's_lshl_b32 s58, s99, 5\ns_add_u32 s58, s58, s100\ns_lshl_b32 s58, s58, 10\ns_add_u32 s58, s58, {WS_O}')
    a.e('v_lshrrev_b32 v2, 5, v1\nv_bfe_u32 v3, v1, 2, 2\nv_lshl_add_u32 v2, v2, 2, v3\nv_lshlrev_b32 v2, 7, v2')
    a.e('v_bfe_u32 v4, v1, 4, 1\nv_lshlrev_b32 v4, 5, v4\nv_and_b32 v5, 3, v1\nv_lshl_add_u32 v4, v5, 3, v4\nv_add_u32 v2, v2, v4')
    a.e('s_lshl_b32 s34, s83, 12\nv_add_u32 v2, s34, v2')
    a.e('v_bfe_u32 v3, v1, 3, 1\nv_lshlrev_b32 v3, 6, v3')
    a.e('v_add_u32 v12, v2, v3\nv_xor_b32 v3, 64, v3\nv_add_u32 v13, v2, v3')
    a.e('v_add_u32 v14, 65536, v12\nv_add_u32 v15, 65536, v13\nv_add_u32 v16, 0x20000, v12\nv_add_u32 v17, 0x20000, v13')
    a.e(f'v_rcp_f32 v2, v{OA+8}\ns_nop 0')
    for q in range(8): a.e(f'v_mul_f32 v{OA+q}, v{OA+q}, v2')
    for q in range(4): a.e(f'v_cvt_pk_bf16_f32 v{112+q}, v{OA+2*q}, v{OA+2*q+1}')
    a.vmem(f'buffer_store_dwordx4 v[112:115], v8, s[16:19], s58 offen {STF}', 'ost')

    srd(a, 92, P_OUT, 2 << 20)
    a.e('v_and_b32 v2, 31, v1\nv_lshlrev_b32 v2, 10, v2\nv_lshrrev_b32 v3, 5, v1\nv_lshl_add_u32 v18, v3, 3, v2')
    a.e('s_lshl_b32 s37, s84, 15\ns_lshl_b32 s34, s81, 7\ns_add_u32 s37, s37, s34\ns_lshl_b32 s34, s83, 5\ns_add_u32 s37, s37, s34')
    XR = 20
    ACC3 = [96, 112]; WF3 = [64, 72, 80]; OF = 128
    def read_b(t, i):
        s, u = divmod(t, 2)
        base = BSLOT[slot_of(s)] + u * 2048
        for rd in range(2):
            addr = base + rd * 1024
            win = addr >> 16; off = addr & 0xffff
            r = WF3[t % 3] + 4 * i + 2 * rd
            a.lds(f'ds_read_b64_tr_b16 v[{r}:{r+1}], v{12+2*win+i} offset:{off}', ('rb', t, i))
    def AOP(t): return f'a[{4*t}:{4*t+3}]' if t < 22 else f'v[{OF+4*(t-22)}:{OF+4*(t-22)+3}]'
    vs.force([('b', 0), ('b', 1)] + [('a', k) for k in range(4)])
    a.vm_wait([('b', 0), ('b', 1)])
    a.e('s_barrier')
    stamp('p3start')
    read_b(0, 0); read_b(0, 1); read_b(1, 0); read_b(1, 1)
    for s in (7, 8):
        for tg, f in b_stage_ops(s): vs.add(tg, f, P['pace3'], dl=1000 + 2*s - 2)
    a.e(f's_lshl_b32 s58, s84, 7\ns_add_u32 s89, s58, {WS_F3}')
    a.e('v_and_b32 v2, 31, v1\nv_lshlrev_b32 v5, 2, v2')
    ld3 = f'buffer_load_dword v3, v5, s[16:19], s89 offen {STF}'
    for t in range(NSTEP3):
        s, u = divmod(t, 2)
        stamp(f't{t}', True)
        t2 = t + 2
        if t2 < NSTEP3 and t2 % 4 == 0:
            s2_ = t2 // 2
            need = [('b', s2_)] + ([('b', s2_ + 1)] if s2_ + 1 < NSTG else [])
            vs.force(need)
            a.vm_wait(need)
            a.e('s_barrier')
            for sf in (s2_ - 3, s2_ - 2):
                nxt = sf + 9
                if sf >= 0 and nxt < NSTG:
                    for tg, f in b_stage_ops(nxt): vs.add(tg, f, P['pace3'], dl=1000 + 2*nxt - 2)
        if t == P.get('t3f', 1):
            a.vm_wait('ost')
            a.e(f's_lshl_b32 s58, s99, 7\ns_lshl_b32 s59, s100, 2\ns_add_u32 s58, s58, s59\ns_add_u32 s58, s58, {WS_F3}')
            a.e(f'v_mov_b32 v4, s{S_NONCE}')
            a.vmem(f'buffer_store_dword v4, v{VFLAG}, s[16:19], s58 offen {STF}', 'f3')
        if t == P.get('t3ld', 7): a.vmem(ld3, 'p3')
        if t == P.get('t3chk', 10):
            a.vm_wait('p3')
            poll_check(a, 3, None, ld3)
            for tt in range(8):
                def f(tt=tt):
                    if tt == 4: a.e('s_add_u32 s86, s86, 4096')
                    a.vmem(f'buffer_load_dwordx4 v[{OF+4*tt}:{OF+4*tt+3}], v8, s[16:19], s86 offen offset:{(tt%4)*1024} {STF}', ('a', 22 + tt))
                vs.add(('a', 22 + tt), f, P['pace3'], dl=1000 + 22 + tt - 4)
        if t == 20:
            for g in range(2):
                a.vmem(f'buffer_load_dwordx2 v[{XR+2*g}:{XR+2*g+1}], v18, s[4:7], s37 offen offset:{16*g}', 'xr')
        for ta in range(t, min(t + 4, NSTEP3)):
            if vs.has(('a', ta)): vs.force(('a', ta))
        a.vm_wait(('a', t))
        for i in range(2):
            w = WF3[t % 3] + 4 * i
            a.lg_wait(('rb', t, i))
            cin = '0' if t == 0 else f'v[{ACC3[i]}:{ACC3[i]+15}]'
            a.e(f'v_mfma_f32_32x32x16_bf16 v[{ACC3[i]}:{ACC3[i]+15}], v[{w}:{w+3}], {AOP(t)}, {cin}')
            if t + 2 < NSTEP3: read_b(t + 2, i)
            vs.poll()
    assert len(vs) == 0, len(vs)
    a.lg_drain()
    a.e('s_barrier')
    stamp('p3end')
    a.e('s_nop 7\ns_nop 3')
    a.e('s_lshl_b32 s34, s82, 15\ns_lshl_b32 s35, s83, 11\ns_add_u32 s34, s34, s35\nv_add_u32 v2, s34, v8')
    a.e('s_lshl_b32 s34, s82, 15\ns_lshl_b32 s35, s83, 13\ns_add_u32 s34, s34, s35\nv_add_u32 v3, s34, v8')
    labs = [a.newlabel('Lq') for _ in range(5)]
    AC = ACC3[0]
    for q in range(4):
        if q: a.label(labs[q])
        if q < 3: a.e(f's_cmp_eq_u32 s83, {q}\ns_cbranch_scc0 {labs[q+1]}')
        for d in range(4):
            if d == q: continue
            for hh in range(2): a.e(f'ds_write_b128 v2, v[{AC+8*d+4*hh}:{AC+8*d+4*hh+3}] offset:{d*8192 + hh*1024}')
        for r in range(8): a.e(f'v_mov_b32 v{64+r}, v{AC+8*q+r}')
        if q < 3: a.e(f's_branch {labs[4]}')
    a.label(labs[4])
    a.e('s_waitcnt lgkmcnt(0)\ns_barrier')
    for k in range(1, 4):
        a.e(f's_add_u32 s34, s83, {k}\ns_and_b32 s34, s34, 3\ns_lshl_b32 s34, s34, 11\nv_add_u32 v4, s34, v3')
        for hh in range(2): a.e(f'ds_read_b128 v[{72+8*(k-1)+4*hh}:{72+8*(k-1)+4*hh+3}], v4 offset:{hh*1024}')
    a.vm_wait('xr')
    a.e('s_waitcnt lgkmcnt(0)')
    for k in range(3):
        for r in range(8): a.e(f'v_add_f32 v{64+r}, v{64+r}, v{72+8*k+r}')
    for g in range(2):
        for q in range(2):
            x = XR + 2 * g + q; r = 64 + 4 * g + 2 * q
            a.e(f'v_lshlrev_b32 v2, 16, v{x}\nv_and_b32 v3, 0xffff0000, v{x}')
            a.e(f'v_add_f32 v{r}, v{r}, v2\nv_add_f32 v{r+1}, v{r+1}, v3')
    for g in range(2):
        for q in range(2):
            r = 64 + 4 * g + 2 * q
            a.e(f'v_cvt_pk_bf16_f32 v{72+2*g+q}, v{r}, v{r+1}')
    for g in range(2):
        a.vmem(f'buffer_store_dwordx2 v[{72+2*g}:{72+2*g+1}], v18, s[92:95], s37 offen offset:{16*g}', 'ost2')
    if a.stamps_on: a.e('s_waitcnt vmcnt(0)')
    stamp('end')
    a.dump_stamps()
    a.label(end)
    a.e('s_endpgm')
    for fn in a.stub_fns: fn()
    a.label('Lcode_end')
```

```python
import sys
from asmlib import *
import fused8, k1
HDR = open('parallel_sum__sliding_block__dense_activation_relu__prompt.s.ref').read().split('; Override launch')[0]
NAME = 'parallel_sum__sliding_block__dense_activation_relu__prompt_kernel'
def build(path, stamps=False, tog=(), P=None, mod=fused8):
    a = Asm(); a.stamps_on = stamps; a.stamp_mode = 'vgpr8'; a.realtime = bool((P or {}).get('realtime'))
    mod.fused(a, NAME, tog, P)
    errs = check_hazards(a.lines)
    out = HDR + f'; @launch grid=(256,1,1) block=(512,1,1) lds={mod.LDS_BYTES}\n'
    out += '.amdgcn_target "amdgcn-amd-amdhsa--gfx950"\n.text\n' + a.text()
    out += '.section .rodata,"a"\n.p2align 6\n' + k1.kd(NAME, mod.NVGPR + mod.NAGPR, mod.NVGPR)
    open(path, 'w').write(out)
    print('written', path, len(out), 'hazards:', len(errs), 'stamps', a.nst, 'est', a.t, getattr(a, 'stamp_names', ''))
if __name__ == '__main__':
    build('f8.s')
    build('f8s.s', stamps=True)
```
